```python
import torch

def _softmax(x, axis=-1):
    return torch.softmax(x, dim=axis)
def _gelu(x):
    return torch.nn.functional.gelu(x, approximate="tanh")
def _silu(x):
    return torch.nn.functional.silu(x)
def _sigmoid(x):
    return torch.sigmoid(x)
def _layernorm(x, axis=-1, eps=1e-5):
    m = x.mean(dim=axis, keepdim=True)
    v = x.var(dim=axis, keepdim=True, unbiased=False)
    return (x - m) / torch.sqrt(v + eps)
def _scatter_add(tgt, idx, src, axis=0):
    return tgt.clone().index_add_(axis, idx, src)
def _segment_sum(src, seg, n):
    out = torch.zeros((n,) + src.shape[1:], dtype=src.dtype)
    return out.index_add_(0, seg, src)
def _pad(x, pw):
    flat = tuple(v for pair in reversed(pw) for v in pair)
    return torch.nn.functional.pad(x, flat)

kernel_name = 'standalone__gqa_softmax__near_ridge'

def setup_inputs():

    _w = (lambda a: (lambda t: t.to(torch.bfloat16) if t.is_floating_point() else t)(torch.as_tensor(a)))
    B, Hq, Hkv, Sq, Sk, D = 16, 16, 8, 384, 384, 256
    return {
        "q": _w((lambda *s: torch.randn(*s, dtype=torch.bfloat16) * 0.8)(B, Hq, Sq, D)),
        "k": _w((lambda *s: torch.randn(*s, dtype=torch.bfloat16) * 0.8)(B, Hkv, Sk, D)),
        "v": _w((lambda *s: torch.randn(*s, dtype=torch.bfloat16) * 0.05)(B, Hkv, Sk, D)),
    }

def reference(q, k, v):
    B, Hq, Sq, D = q.shape
    Hkv = k.shape[1]
    rep = Hq // Hkv
    k = (lambda x, n, axis: torch.repeat_interleave(x, n, dim=axis))(k, rep, axis=1)
    v = (lambda x, n, axis: torch.repeat_interleave(x, n, dim=axis))(v, rep, axis=1)
    scale = D ** -0.5
    scores = torch.einsum("bhqd,bhkd->bhqk", q, k) * scale
    p = _softmax(scores, axis=-1)
    return torch.einsum("bhqk,bhkd->bhqd", p, v)
```

```python
import re

def R(kind, base, n=1):
    return [(kind, base + i) for i in range(n)]
def rn(kind, base, n=1):
    return "%s%d" % (kind, base) if n == 1 else "%s[%d:%d]" % (kind, base, base + n - 1)

class Ins:
    def __init__(self, text, kind, rd=(), wr=(), cost=4, tag=None, need=()):
        self.text = text; self.kind = kind
        self.rd = set(rd); self.wr = set(wr); self.cost = cost; self.tag = tag
        self.need = set(need)
        self.site = None
    def __repr__(self): return self.text

def opnd(x):
    if isinstance(x, tuple):
        if len(x) == 2: x = (x[0], x[1], 1)
        neg = ""
        k = x[0]
        if k.startswith("-"): neg = "-"; k = k[1:]
        return neg + rn(k, x[1], x[2]), R(k, x[1], x[2])
    return str(x), []

def V(n, c=1): return ("v", n, c)
def A(n, c=1): return ("a", n, c)
def S(n, c=1): return ("s", n, c)
def NV(n): return ("-v", n, 1)

TRANS = ("v_exp_f32", "v_rcp_f32", "v_log_f32", "v_rsq_f32", "v_sqrt_f32")
def valu(op, dst, *srcs, rmw=False, mods=""):
    dt, dr = opnd(dst)
    ts = [dt]; rd = []
    for s in srcs:
        t, r = opnd(s); ts.append(t); rd += r
    if rmw: rd += dr
    base = op.replace("_e64", "").replace("_e32", "")
    kind = "trans" if base in TRANS else "valu"
    return Ins("%s %s%s" % (op, ", ".join(ts), (" " + mods) if mods else ""), kind, rd, dr, 8 if kind == "trans" else 4)
def readfirstlane(sd, vs):
    return Ins("v_readfirstlane_b32 s%d, v%d" % (sd, vs), "rfl", R("v", vs), R("s", sd))
def permswap(a, b):
    return Ins("v_permlane32_swap_b32 v%d, v%d" % (a, b), "perm", R("v", a) + R("v", b), R("v", a) + R("v", b))
def mfma(dst, a, b, c, need=()):
    dt, dr = opnd(dst); at, ar = opnd(a); bt, br = opnd(b); ct, cr = opnd(c)
    i = Ins("v_mfma_f32_32x32x16_bf16 %s, %s, %s, %s" % (dt, at, bt, ct), "mfma", ar + br + cr, dr, 8, need=need)
    i.ab = set(ar + br); i.c = set(cr)
    return i
def dsr(op, dst, addr, off=0, tag=None):
    dt, dr = opnd(dst)
    assert 0 <= off < 65536, off
    return Ins("%s %s, v%d offset:%d" % (op, dt, addr, off), "dsr", R("v", addr), dr, 4, tag)
def dsw(op, addr, src, off=0, tag=None, cost=8):
    st, sr = opnd(src)
    assert 0 <= off < 65536, off
    return Ins("%s v%d, %s offset:%d" % (op, addr, st, off), "dsw", R("v", addr) + sr, [], cost, tag)
def dma(voff, srd, soff, off=0, flags="", tag=None, cost=16):
    assert 0 <= off < 4096
    st, sr = opnd(soff)
    return Ins("buffer_load_dwordx4 v%d, s[%d:%d], %s offen offset:%d %s lds" % (voff, srd, srd + 3, st, off, flags), "dma",
               R("v", voff) + R("s", srd, 4) + sr + [("m0", 0)], [], cost, tag)
def vstore(src, voff, srd, soff, off=0, flags="", tag=None, cost=16):
    assert 0 <= off < 4096
    dt, dr = opnd(src); st, sr = opnd(soff)
    i = Ins("buffer_store_dwordx4 %s, v%d, s[%d:%d], %s offen offset:%d %s" % (dt, voff, srd, srd + 3, st, off, flags), "vst",
               dr + R("v", voff) + R("s", srd, 4) + sr, [], cost, tag)
    i.data = set(dr)
    return i
def salu(op, dst, *srcs):
    wr = []; rd = []; ts = []
    if dst is not None:
        if dst == "m0": ts.append("m0"); wr = [("m0", 0)]
        else:
            t, r = opnd(dst); ts.append(t); wr = r
    for s in srcs:
        if s == "m0": ts.append("m0"); rd.append(("m0", 0)); continue
        t, r = opnd(s); ts.append(t); rd += r
    return Ins("%s %s" % (op, ", ".join(ts)), "salu", rd, wr, 4)
def barrier(): return Ins("s_barrier", "bar", cost=4)
def waitlds(tag): return Ins("", "waitlds", cost=0, tag=tag)
def waitvm(tag): return Ins("", "waitvm", cost=0, tag=tag)
def raw(text, kind="raw", cost=4, rd=(), wr=()): return Ins(text, kind, rd, wr, cost)
def label(name): return Ins(name + ":", "label", cost=0)

def insert_waits(stream, forced):
    out = []; lq = []; vq = []; needed = {}
    pend_l = None; pend_v = None
    for ins in stream:
        nl = None; nv = None
        if ins.kind == "waitlds":
            idx = [i for i, e in enumerate(lq) if e[1] == ins.tag or ins.tag == "*"]
            if idx: nl = len(lq) - 1 - idx[-1]
        elif ins.kind == "waitvm":
            idx = [i for i, e in enumerate(vq) if e == ins.tag or ins.tag == "*"]
            if idx: nv = len(vq) - 1 - idx[-1]
        else:
            touch = ins.rd | ins.wr | ins.need
            idx = [i for i, e in enumerate(lq) if e[0] & touch]
            if idx: nl = len(lq) - 1 - idx[-1]
        if nl is not None: nl = min(nl, 15)
        if nv is not None: nv = min(nv, 63)
        if ins.site is not None:
            a, b = needed.get(ins.site, (None, None))
            mn = lambda x, y: x if y is None else (y if x is None else min(x, y))
            needed[ins.site] = (mn(a, nl), mn(b, nv))
            fa, fb = forced.get(ins.site, (None, None))
            nl = mn(nl, fa); nv = mn(nv, fb)
        if nl is not None:
            pend_l = nl if pend_l is None else min(pend_l, nl)
            del lq[:max(0, len(lq) - nl)]
        if nv is not None:
            pend_v = nv if pend_v is None else min(pend_v, nv)
            del vq[:max(0, len(vq) - nv)]
        if ins.kind in ("waitlds", "waitvm"):
            continue
        if pend_l is not None or pend_v is not None:
            t = "s_waitcnt" + (" vmcnt(%d)" % pend_v if pend_v is not None else "") + (" lgkmcnt(%d)" % pend_l if pend_l is not None else "")
            w = Ins(t, "wait"); w.site = None; w.period = getattr(ins, "period", None)
            out.append(w); pend_l = pend_v = None
        out.append(ins)
        if ins.kind == "dsr": lq.append((set(ins.wr), ins.tag))
        elif ins.kind == "dsw": lq.append((set(), ins.tag))
        elif ins.kind in ("dma", "vst"): vq.append(ins.tag)
    return out, needed

def states(ins):
    if ins.kind == "label": return 0
    if ins.kind == "nop": return ins.n + 1
    return 1

def required_gap(prev, cur):
    g = 0
    vw = prev.kind in ("valu", "trans", "perm", "rfl")
    if vw and cur.kind == "mfma" and (prev.wr & cur.rd): g = max(g, 2)
    if prev.kind == "mfma":
        if cur.kind == "mfma":
            if prev.wr & cur.ab: g = max(g, 12)
            if prev.wr & cur.c and prev.wr != cur.c: g = max(g, 10)
            if (prev.wr & cur.wr) and not (prev.wr == cur.c): g = max(g, 12)
        elif cur.kind in ("valu", "trans", "perm", "rfl", "dsr", "dsw", "vst", "dma"):
            if prev.wr & (cur.rd | cur.wr): g = max(g, 12)
            if cur.kind in ("valu", "trans", "perm") and (prev.c & cur.wr): g = max(g, 7)
    if prev.kind == "trans" and cur.kind in ("valu", "perm", "rfl", "dsw", "vst", "mfma") and (prev.wr & cur.rd): g = max(g, 1)
    if vw and cur.kind == "perm" and (prev.wr & cur.rd): g = max(g, 2)
    if vw and cur.kind == "rfl" and (prev.wr & cur.rd): g = max(g, 1)
    if prev.kind == "rfl":
        if cur.kind in ("dma", "vst") and (prev.wr & cur.rd): g = max(g, 5)
        if cur.kind in ("valu", "trans") and (prev.wr & cur.rd): g = max(g, 2)
        if cur.kind == "salu" and (prev.wr & cur.rd): g = max(g, 4)
    if prev.kind == "salu" and cur.kind == "dma" and ("m0", 0) in prev.wr: g = max(g, 1)
    if prev.kind == "vst" and (prev.data & cur.wr): g = max(g, 2)
    return g

def insert_nops(stream, forced):
    out = []; needed = {}
    for ins in stream:
        need = 0; dist = 0
        for prev in reversed(out[-40:]):
            g = required_gap(prev, ins)
            if g > dist: need = max(need, g - dist)
            dist += states(prev)
            if dist >= 16: break
        if ins.site is not None:
            needed[ins.site] = max(needed.get(ins.site, 0), need)
            need = max(need, forced.get(ins.site, 0))
        while need > 0:
            k = min(need, 16)
            n = Ins("s_nop %d" % (k - 1), "nop"); n.n = k - 1; n.period = getattr(ins, "period", None)
            out.append(n); need -= k
        out.append(ins)
    return out, needed

def finalize(stream):
    fw = {}; fn = {}
    for it in range(10):
        s1, nw = insert_waits(stream, fw)
        s2, nn = insert_nops(s1, fn)
        mn = lambda x, y: x if y is None else (y if x is None else min(x, y))
        nfw = {k: (mn(v[0], fw.get(k, (None, None))[0]), mn(v[1], fw.get(k, (None, None))[1])) for k, v in nw.items()}
        nfn = {k: max(v, fn.get(k, 0)) for k, v in nn.items()}
        if nfw == fw and nfn == fn: return s2
        fw, fn = nfw, nfn
    raise RuntimeError("no fixed point")
```

```python
NAME = "standalone__gqa_softmax__near_ridge_kernel"
HEADER_COMMENT = """; Kernarg layout for this problem (48 bytes, ptrs only, base s[0:1]):
"""
def wrap(body, grid, block, lds, nvgpr, accum, nsgpr=102):
    s = HEADER_COMMENT
    s += "; @launch grid=(%d,1,1) block=(%d,1,1) lds=%d\n" % (grid, block, lds)
    s += '.amdgcn_target "amdgcn-amd-amdhsa--gfx950"\n.text\n.globl %s\n.p2align 8\n.type %s,@function\n%s:\n' % (NAME, NAME, NAME)
    s += body
    s += "\n.section .rodata,\"a\"\n.p2align 6\n.amdhsa_kernel %s\n" % NAME
    s += "  .amdhsa_next_free_vgpr %d\n  .amdhsa_next_free_sgpr %d\n  .amdhsa_accum_offset %d\n" % (nvgpr, nsgpr, accum)
    s += "  .amdhsa_group_segment_fixed_size 0\n  .amdhsa_kernarg_size 48\n  .amdhsa_user_sgpr_count 2\n"
    s += "  .amdhsa_user_sgpr_kernarg_segment_ptr 1\n  .amdhsa_system_sgpr_workgroup_id_x 1\n.end_amdhsa_kernel\n"
    return s
```

```python
import sys, struct
from genlib import *
from asmlib import *

class Cfg:
    ld_flags = ""
    q_flags = ""
    st_flags = ""
    stamp = False
    pairwait = False
    e64 = False
    vring = 11
    blate_end = 24
    e_start = 2; e_end = 34
    y_slot = 37
    max1_start = 34; max1_end = 46
    x_slot = 52
    bearly_start = 56; bearly_end = 95
    s2_early = 8

cfg = Cfg()
for arg in sys.argv[2:]:
    k, v = arg.split("=")
    cur = getattr(cfg, k)
    setattr(cfg, k, type(cur)(v) if not isinstance(cur, bool) else v in ("1", "True"))

HEAD_BYTES = 196608
XMAX = 0; XSUM = 512
QBASE = 1024 * 2; QSLOT = 16896
PBASE = QBASE + 4 * QSLOT; PBUF = 24576
XBASE = PBASE + 2 * PBUF; XW = 11264
LDS_TOTAL = XBASE + 4 * XW
assert LDS_TOTAL <= 163840
vS = 0; vO = 48; vF = 80; NF = 7; vT = 108
q_rd, p_rd, p_wr, x_wr, x_rd, dma_voff, o_voff = 112, 113, 114, 115, 116, 117, 118
mxa, mxb, mc, sum0, sum1, rl = 119, 120, 121, 122, 123, 124
v_voff, v_rd0, v_rd1 = 125, 126, 127
k_voff0, k_voff1 = 48, 49
k_rdX, k_rdY = 52, 56
tmp = 60
def Kfrag(kt, ks): return A(kt * 64 + ks * 4, 4)
def Vfrag(s, dt):
    return A(192 + s * 8 + dt * 4, 4) if s < 8 else V(128 + (s - 8) * 8 + dt * 4, 4)
def Sreg(kt, r=0): return vS + kt * 16 + r
def Freg(f): return vF + (f % NF) * 4
sQ, sK, sV, sO, sW = 8, 12, 16, 20, 40
s_c, s_wave, s_qg, s_og, s_qoff, s_wq, s_pd, s_t0, s_t1, s_t2 = 24, 25, 26, 27, 28, 29, 30, 31, 32, 33
s_xw, s_yw, s_big, s_qd = 34, 35, 36, 37
s_st = 48
CONST = struct.unpack("<I", struct.pack("<f", 1.4426950408889634 / 16.0))[0]

def e(op): return op + "_e64" if cfg.e64 else op

stamp_n = [0]
def stamp():
    if not cfg.stamp: return []
    i = stamp_n[0]; stamp_n[0] += 1
    assert i < 8
    return [raw("s_memrealtime s[%d:%d]" % (s_st + 2 * i, s_st + 2 * i + 1))]

def setup():
    o = []
    a = o.append
    a(raw("s_cmp_ge_u32 s2, 256")); a(raw("s_cbranch_scc1 L_done"))
    o += stamp()
    a(raw("s_load_dwordx4 s[4:7], s[0:1], 0"))
    a(raw("s_load_dwordx4 s[44:47], s[0:1], 16"))
    if cfg.stamp: a(raw("s_load_dwordx2 s[38:39], s[0:1], 40"))
    a(salu("s_and_b32", S(3), S(2), 7)); a(salu("s_lshr_b32", S(s_t0), S(2), 3))
    a(salu("s_lshl_b32", S(3), S(3), 5)); a(salu("s_add_u32", S(3), S(3), S(s_t0)))
    a(salu("s_lshr_b32", S(s_t0), S(3), 1))
    a(salu("s_mul_i32", S(s_t1), S(3), HEAD_BYTES)); a(salu("s_mul_i32", S(s_t2), S(s_t0), HEAD_BYTES))
    L, W, Q, H = tmp, tmp + 1, tmp + 2, tmp + 3
    t0, t1, t2 = tmp + 4, tmp + 5, tmp + 6
    a(valu("v_lshrrev_b32", V(W), 6, V(0))); a(valu("v_and_b32", V(L), 63, V(0)))
    a(valu("v_and_b32", V(Q), 31, V(0))); a(valu("v_bfe_u32", V(H), V(0), 5, 1))
    a(readfirstlane(s_wave, W))
    a(valu("v_xor_b32", V(t0), V(Q), V(H))); a(valu("v_lshlrev_b32", V(t0), 4, V(t0)))
    a(valu("v_lshl_add_u32", V(t0), V(H), 9, V(t0))); a(valu("v_lshl_add_u32", V(dma_voff), V(W), 12, V(t0)))
    a(valu("v_lshrrev_b32", V(t0), 3, V(L))); a(valu("v_and_b32", V(t1), 7, V(L))); a(valu("v_lshrrev_b32", V(t2), 4, V(L)))
    a(valu("v_xor_b32", V(t2), V(t1), V(t2))); a(valu("v_lshlrev_b32", V(t2), 4, V(t2)))
    a(valu("v_lshl_add_u32", V(t2), V(t0), 9, V(t2)))
    a(valu("v_mul_u32_u24", V(k_voff0), 49152, V(W))); a(valu("v_add_u32", V(k_voff0), V(k_voff0), V(t2)))
    a(valu("v_xor_b32", V(k_voff1), 64, V(k_voff0)))
    a(raw("s_waitcnt lgkmcnt(0)"))
    def srd(d, p, off):
        a(salu("s_add_u32", S(d), S(p), S(off))); a(salu("s_addc_u32", S(d + 1), S(p + 1), 0))
        a(salu("s_mov_b32", S(d + 2), HEAD_BYTES)); a(salu("s_mov_b32", S(d + 3), "0x20000"))
    srd(sQ, 4, s_t1); srd(sK, 6, s_t2)
    a(salu("s_mul_i32", S(s_wq), S(s_wave), 4 * 1056)); a(salu("s_add_u32", S(s_wq), S(s_wq), QBASE))
    a(salu("s_mul_i32", S(s_xw), S(s_wave), XW)); a(salu("s_add_u32", S(s_xw), S(s_xw), XBASE))
    a(salu("s_mul_i32", S(s_yw), S(s_wave), 12288)); a(salu("s_add_u32", S(s_yw), S(s_yw), PBASE))
    first = o
    o = []; a = o.append
    srd(sV, 44, s_t2); srd(sO, 46, s_t1)
    if cfg.stamp:
        a(salu("s_mov_b32", S(sW), S(38))); a(salu("s_mov_b32", S(sW + 1), S(39)))
        a(salu("s_mov_b32", S(sW + 2), 268435456)); a(salu("s_mov_b32", S(sW + 3), "0x20000"))
    a(salu("s_mov_b32", S(s_c), "0x%08x" % CONST)); a(salu("s_mov_b32", S(s_big), HEAD_BYTES))
    a(valu("v_bfe_u32", V(t2), V(L), 4, 1)); a(valu("v_lshlrev_b32", V(t2), 2, V(t2))); a(valu("v_xor_b32", V(t2), V(t1), V(t2)))
    a(valu("v_lshlrev_b32", V(t2), 4, V(t2))); a(valu("v_lshl_add_u32", V(t2), V(t0), 9, V(t2)))
    a(valu("v_lshl_add_u32", V(v_voff), V(W), 7, V(t2)))
    a(valu("v_lshrrev_b32", V(t0), 1, V(Q))); a(valu("v_mul_u32_u24", V(t0), 1056, V(t0)))
    a(valu("v_and_b32", V(t1), 1, V(Q))); a(valu("v_lshl_add_u32", V(t0), V(t1), 9, V(t0)))
    a(valu("v_xor_b32", V(t1), V(t1), V(H))); a(valu("v_lshl_add_u32", V(t0), V(t1), 4, V(t0)))
    a(valu("v_add_u32", V(q_rd), QBASE, V(t0)))
    a(valu("v_lshlrev_b32", V(t0), 4, V(L))); a(valu("v_add_u32", V(p_rd), PBASE, V(t0)))
    a(valu("v_mul_u32_u24", V(t1), 6144, V(W))); a(valu("v_add_u32", V(p_wr), V(p_rd), V(t1)))
    a(valu("v_lshlrev_b32", V(x_rd), 4, V(Q))); a(valu("v_lshl_add_u32", V(x_wr), V(W), 2, V(x_rd)))
    a(valu("v_lshlrev_b32", V(t0), 9, V(Q))); a(valu("v_lshl_add_u32", V(t0), V(H), 4, V(t0)))
    a(valu("v_lshl_add_u32", V(o_voff), V(W), 7, V(t0)))
    a(valu("v_bfe_u32", V(t0), V(Q), 1, 3)); a(valu("v_xor_b32", V(t0), V(t0), V(H)))
    a(valu("v_lshlrev_b32", V(t0), 4, V(t0))); a(valu("v_lshl_add_u32", V(t0), V(Q), 7, V(t0)))
    for i in range(4):
        a(valu("v_xor_b32", V(t1), 32 * i, V(t0)))
        a(valu("v_add_u32", V(k_rdX + i), S(s_xw), V(t1))); a(valu("v_add_u32", V(k_rdY + i), S(s_yw), V(t1)))
    a(valu("v_bfe_u32", V(t0), V(L), 2, 2)); a(valu("v_lshl_add_u32", V(t0), V(H), 2, V(t0)))
    a(valu("v_bfe_u32", V(t1), V(L), 4, 1)); a(valu("v_lshlrev_b32", V(t1), 1, V(t1)))
    a(valu("v_and_b32", V(t2), 1, V(L))); a(valu("v_add_u32", V(t1), V(t1), V(t2)))
    a(valu("v_bfe_u32", V(t2), V(t0), 1, 1)); a(valu("v_lshl_add_u32", V(t1), V(t2), 2, V(t1)))
    a(valu("v_lshlrev_b32", V(t1), 4, V(t1))); a(valu("v_lshl_add_u32", V(t1), V(t0), 7, V(t1)))
    a(valu("v_bfe_u32", V(t2), V(L), 1, 1)); a(valu("v_lshl_add_u32", V(t1), V(t2), 3, V(t1)))
    a(valu("v_xor_b32", V(t2), 64, V(t1)))
    a(valu("v_add_u32", V(v_rd0), S(s_xw), V(t1))); a(valu("v_add_u32", V(v_rd1), S(s_xw), V(t2)))
    a(salu("s_mov_b32", S(s_pd), PBUF))
    return first, o

def q_dma_const(t):
    o = []
    o.append([salu("s_mov_b32", S(s_t0), t * 16384)])
    for jj in range(4):
        o.append([salu("s_add_u32", "m0", S(s_wq), (t % 4) * QSLOT + jj * 32), raw("s_nop 0", "nop0"),
                  dma(dma_voff, sQ, S(s_t0), jj * 1024, cfg.q_flags, tag="Q%d" % t)])
    o[1] = o[0] + o[1]
    return o[1:]
KSLOT = ["Y0", "Y1", "X0", "X1", "Y2"]
def k_slot(u):
    s = KSLOT[u % 5]
    return (s_xw if s[0] == "X" else s_yw, k_rdX if s[0] == "X" else k_rdY, int(s[1]) * 4096)
def k_dma(u):
    j, kt = divmod(u, 3)
    sb, _, off = k_slot(u)
    o = []
    for pp in range(4):
        o += [salu("s_add_u32", "m0", S(sb), off + pp * 1024), salu("s_mov_b32", S(s_t0), kt * 16384 + pp * 4096 + j * 128),
              dma(k_voff1 if pp & 1 else k_voff0, sK, S(s_t0), 0, cfg.ld_flags, tag="K%d" % u)]
    return o
def k_read(u):
    j, kt = divmod(u, 3)
    _, rd, off = k_slot(u)
    return [waitvm("K%d" % u)] + [dsr("ds_read_b128", Kfrag(kt, 4 * j + i), rd + i, off, tag="KR%d" % u) for i in range(4)]
def v_dma(i):
    return [salu("s_add_u32", "m0", S(s_xw), (i % cfg.vring) * 1024), salu("s_mov_b32", S(s_t0), i * 4096),
            dma(v_voff, sV, S(s_t0), 0, cfg.ld_flags, tag="V%d" % i)]
def v_read(i):
    s, jj = divmod(i, 2)
    o = [waitvm("V%d" % i)]
    for dt in range(2):
        k, b, _ = Vfrag(s, dt)
        o.append(dsr("ds_read_b64_tr_b16", (k, b + 2 * jj, 2), v_rd1 if dt else v_rd0, (i % cfg.vring) * 1024, tag="VR%d" % i))
    return o
def dummy_st():
    return [vstore(V(vT, 4), o_voff, sO, S(s_big), 0, "", tag="D")]

def frag_read(f):
    f2 = f % 56
    if f2 < 32: return dsr("ds_read_b128", V(Freg(f), 4), q_rd, (f2 % 16) * 32)
    return dsr("ds_read_b128", V(Freg(f), 4), p_rd, (f2 - 32) * 1024)
def slot_last(f):
    f2 = f % 56; base = (f // 56) * 96
    if f2 < 16: return base + 2 * f2 + 1
    if f2 < 32: return base + 32 + (f2 - 16)
    return base + 48 + 2 * (f2 - 32) + 1
def mfma_A(slot):
    if slot < 32: ks, kt = divmod(slot, 2); f = ks
    else: ks = slot - 32; kt = 2; f = 16 + ks
    need = ()
    if cfg.pairwait and f % 2 == 0: need = R("v", Freg(f + 1), 4)
    return mfma(V(Sreg(kt), 16), Kfrag(kt, ks), V(Freg(f), 4), V(Sreg(kt), 16) if ks else 0, need=need)
def mfma_C(slot, obase=vO):
    s, dt = divmod(slot - 48, 2); f = 32 + s
    need = ()
    if cfg.pairwait and f % 2 == 0: need = R("v", Freg(f + 1), 4)
    return mfma(V(obase + dt * 16, 16), Vfrag(s, dt), V(Freg(f), 4), V(obase + dt * 16, 16) if s else 0, need=need)

def b_chunk(kt, i, first):
    b = Sreg(kt, 8 * i)
    it = []
    fma = lambda r: valu("v_fma_f32", V(b + r), V(b + r), S(s_c), NV(mc))
    ex = lambda r: valu(e("v_exp_f32"), V(b + r), V(b + r))
    def add(r):
        sm = sum0 if r % 2 == 0 else sum1
        if first and r < 2: return valu(e("v_mov_b32"), V(sm), V(b + r))
        return valu(e("v_add_f32"), V(sm), V(sm), V(b + r))
    cvt = lambda j: valu("v_cvt_pk_bf16_f32", V(b + j), V(b + 2 * j), V(b + 2 * j + 1))
    seq = [fma(0), fma(1), ex(0), fma(2), ex(1), fma(3), ex(2), add(0), fma(4), ex(3), add(1), fma(5), ex(4), add(2), cvt(0), fma(6), ex(5), add(3),
           fma(7), ex(6), add(4), cvt(1), ex(7), add(5), add(6), cvt(2), add(7), cvt(3),
           dsw("ds_write_b128", p_wr, V(b, 4), (2 * kt + i) * 1024, tag="PW")]
    return [[x] for x in seq]
def max_ops(kts, first):
    regs = []
    for kt in kts: regs += [Sreg(kt, r) for r in range(16)]
    o = []
    ch = [mxa, mxb]; started = [not first, not first]
    i = 0; c = 0
    while i < len(regs):
        m = ch[c]
        if not started[c]:
            o.append(valu("v_max3_f32", V(m), V(regs[i]), V(regs[i + 1]), V(regs[i + 2]))); i += 3; started[c] = True
        elif i + 1 < len(regs):
            o.append(valu("v_max3_f32", V(m), V(m), V(regs[i]), V(regs[i + 1]))); i += 2
        else:
            o.append(valu(e("v_max_f32"), V(m), V(m), V(regs[i]))); i += 1
        c ^= 1
    return [[x] for x in o]
def max_publish():
    return [[valu(e("v_max_f32"), V(mxa), V(mxa), V(mxb))], [valu(e("v_mov_b32"), V(mxb), V(mxa))],
            [permswap(mxa, mxb)], [valu(e("v_max_f32"), V(mxa), V(mxa), V(mxb))],
            [dsw("ds_write_b32", x_wr, V(mxa), XMAX, tag="XM", cost=4)]]
def max_fetch():
    return [[valu("v_max3_f32", V(mxa), V(vT), V(vT + 1), V(vT + 2))], [valu(e("v_max_f32"), V(mxa), V(mxa), V(vT + 3))],
            [valu(e("v_mul_f32"), V(mc), S(s_c), V(mxa))]]
def sum_publish():
    return [[valu(e("v_add_f32"), V(sum0), V(sum0), V(sum1))], [valu(e("v_mov_b32"), V(sum1), V(sum0))],
            [permswap(sum0, sum1)], [valu(e("v_add_f32"), V(sum0), V(sum0), V(sum1))],
            [dsw("ds_write_b32", x_wr, V(sum0), XSUM, tag="PW", cost=4)]]
def sum_fetch():
    return [[valu(e("v_add_f32"), V(vT), V(vT), V(vT + 1))], [valu(e("v_add_f32"), V(vT + 2), V(vT + 2), V(vT + 3))],
            [valu(e("v_add_f32"), V(vT), V(vT), V(vT + 2))], [valu(e("v_rcp_f32"), V(rl), V(vT))]]
def epi(obase, rlreg=rl, dts=(0, 1)):
    o = []
    for dt in dts:
        for jh in range(2):
            b = obase + dt * 16 + jh * 8
            mul = lambda r: valu(e("v_mul_f32"), V(b + r), V(rlreg), V(b + r))
            cvt = lambda j: valu("v_cvt_pk_bf16_f32", V(b + j), V(b + 2 * j), V(b + 2 * j + 1))
            o += [mul(0), mul(1), mul(2), mul(3), cvt(0), mul(4), mul(5), cvt(1), mul(6), mul(7), cvt(2), cvt(3),
                  vstore(V(b, 4), o_voff, sO, S(s_og), (2 * dt + jh) * 32, cfg.st_flags, tag="ST")]
    return [[x] for x in o]

class Sched:
    def __init__(self, n0, n1):
        self.n0 = n0; self.n1 = n1
        self.sl = {s: [] for s in range(n0, n1)}
        self.seq = 0
    def at(self, slot, item, prio=5):
        slot = max(self.n0, min(self.n1 - 1, slot))
        self.sl[slot].append((prio, self.seq, item)); self.seq += 1
    def spread(self, items, s0, s1, prio=5):
        tot = sum(sum(i.cost for i in it) for it in items); n = s1 - s0 + 1
        acc = 0
        for it in items:
            c = sum(i.cost for i in it)
            self.at(s0 + min(n - 1, int((acc + c / 2.0) * n / tot)), it, prio); acc += c
    def emit(self, mf):
        out = []; prof = []
        for s in range(self.n0, self.n1):
            m = mf(s)
            if m is not None: out.append(m)
            c = 0
            for _, _, it in sorted(self.sl[s], key=lambda x: (x[0], x[1])):
                out += it; c += sum(i.cost for i in it)
            prof.append(c)
        return out, prof

def loop_dma():
    o = [[salu("s_add_u32", S(s_t1), S(s_wq), S(s_qoff))]]
    for jj in range(4):
        o.append([salu("s_add_u32", "m0", S(s_t1), jj * 32) if jj else salu("s_mov_b32", "m0", S(s_t1)), raw("s_nop 0", "nop0"),
                  dma(dma_voff, sQ, S(s_qg), jj * 1024, cfg.q_flags, tag="QN")])
    return o
def q_advance():
    return [[salu("s_add_u32", S(s_t2), S(s_qoff), QSLOT), salu("s_cmp_eq_u32", None, S(s_t2), 4 * QSLOT), salu("s_cselect_b32", S(s_t2), 0, S(s_t2))],
            [salu("s_sub_u32", S(s_qd), S(s_t2), S(s_qoff)), salu("s_mov_b32", S(s_qoff), S(s_t2))],
            [valu(e("v_add_u32"), V(q_rd), S(s_qd), V(q_rd))]]

def period(p):
    sc = Sched(0, 96)
    zslot = 95 if p == 1 else -1
    for f in range(NF, 56 + NF):
        s = slot_last(f - NF)
        if 32 <= f < 56: s = max(s, cfg.y_slot)
        if f >= 56:
            s = max(s, zslot)
        sc.at(s, [frag_read(f)], prio=3)
    late = []
    for i in range(cfg.s2_early // 8, 2): late += b_chunk(2, i, False)
    late += sum_publish()
    sc.spread(late, 0, cfg.blate_end, prio=5)
    sc.at(cfg.blate_end + 2, [valu(e("v_add_u32"), V(p_wr), S(s_pd), V(p_wr))], prio=7)
    if p >= 2:
        sc.spread(epi(vO), cfg.e_start, cfg.e_end, prio=6)
        sc.at(cfg.e_end + 1, [salu("s_add_u32", S(s_og), S(s_og), 16384)], prio=8)
    sc.at(cfg.y_slot, [waitlds("PW"), barrier(), dsr("ds_read_b128", V(vT, 4), x_rd, XSUM)], prio=1)
    sc.spread(sum_fetch(), cfg.y_slot + 4, cfg.y_slot + 6, prio=6)
    sc.spread(max_ops([0, 1], True), cfg.max1_start, cfg.max1_end, prio=5)
    sc.spread(max_ops([2], False) + max_publish(), 49, cfg.x_slot - 1, prio=5)
    xs = [waitlds("XM")]
    if p >= 2: xs.append(waitvm("Q%d" % (p + 1)))
    sc.at(cfg.x_slot, xs + [barrier(), dsr("ds_read_b128", V(vT, 4), x_rd, XMAX)], prio=1)
    if p >= 2:
        d = loop_dma()
        for it in d:
            for i in it:
                if i.kind == "dma": i.tag = "Q%d" % (p + 4)
        sc.at(cfg.x_slot, d[0] + d[1], prio=4)
        sc.at(cfg.x_slot + 1, d[2], prio=4); sc.at(cfg.x_slot + 2, d[3], prio=4); sc.at(cfg.x_slot + 3, d[4], prio=4)
        sc.at(cfg.x_slot + 4, [salu("s_add_u32", S(s_qg), S(s_qg), 16384)], prio=8)
    sc.spread(q_advance(), cfg.x_slot + 6, cfg.x_slot + 8, prio=8)
    early = max_fetch() + b_chunk(0, 0, True) + b_chunk(0, 1, False) + b_chunk(1, 0, False) + b_chunk(1, 1, False)
    for i in range(cfg.s2_early // 8): early += b_chunk(2, i, False)
    sc.spread(early, cfg.bearly_start, cfg.bearly_end, prio=5)
    sc.at(84, [valu(e("v_add_u32"), V(p_rd), S(s_pd), V(p_rd))], prio=7)
    sc.at(86, [salu("s_sub_u32", S(s_pd), 0, S(s_pd))], prio=8)
    if p == 1:
        pos = {}
        for i in range(4, 12): pos[i] = 4 + (i - 4) * 6
        for i in range(12, 48): pos[i] = 48 + (i - 12)
        extra = []
        for t in (2, 3, 4, 5):
            extra += q_dma_const(t)
            if t in (3, 4): extra += [dummy_st() for _ in range(4)]
        for i in range(4, 48):
            sc.at(pos[i], v_read(i), prio=2)
            j = i - 1 + cfg.vring
            if j < 48: sc.at(pos[i], [waitlds("VR%d" % (i - 1))] + v_dma(j), prio=9)
            else:
                for _ in range(2):
                    if extra: sc.at(pos[i], extra.pop(0), prio=9)
        for it in extra: sc.at(90, it, prio=9)
        sc.at(95, [waitvm("Q2"), barrier()], prio=2)
        sc.at(94, [salu("s_mov_b32", S(s_qg), 6 * 16384), salu("s_mov_b32", S(s_og), 0)], prio=9)
    else:
        sc.at(95, [salu("s_cmp_lt_u32", None, S(s_og), 10 * 16384), raw("s_cbranch_scc1 L_loop", "branch")], prio=10)
    out, prof = sc.emit(lambda s: mfma_A(s) if s < 48 else mfma_C(s))
    return out, prof

def period0(rest_setup):
    o = []
    for it in q_dma_const(0): o += it
    for u in range(5): o += k_dma(u)
    o += rest_setup
    o.append(salu("s_mov_b32", S(s_qoff), 0))
    nxt = []
    vnext = [0]
    def refill(u):
        r = [waitlds("KR%d" % u)]
        if u + 5 < 12: return r + k_dma(u + 5)
        x = []
        if u == 7:
            for it in q_dma_const(1): x += it
            for i in (0, 1, 2): pass
        return r + x
    for u in range(12):
        o += k_read(u)
        if u == 0:
            o += [waitvm("Q0"), barrier()]
        if u >= 1: o += refill(u - 1)
        if u == 9:
            for i in range(cfg.vring): o += v_dma(i)
        if u % 3 == 2:
            j = u // 3
            for i in range(4): o.append(dsr("ds_read_b128", V(vF + 4 * i, 4), q_rd, (4 * j + i) * 32))
            for i in range(4):
                ks = 4 * j + i
                for kt in range(3):
                    o.append(mfma(V(Sreg(kt), 16), Kfrag(kt, ks), V(vF + 4 * i, 4), V(Sreg(kt), 16) if ks else 0))
    o += stamp()
    for it in max_ops([0, 1, 2], True) + max_publish(): o += it
    o += [waitlds("XM"), waitvm("Q1"), barrier(), dsr("ds_read_b128", V(vT, 4), x_rd, XMAX)]
    for it in q_advance(): o += it
    early = max_fetch() + b_chunk(0, 0, True) + b_chunk(0, 1, False) + b_chunk(1, 0, False) + b_chunk(1, 1, False)
    for i in range(cfg.s2_early // 8): early += b_chunk(2, i, False)
    n = len(early)
    for k, it in enumerate(early):
        o += it
        for i in range(4):
            if k == (i + 1) * n // 5:
                o += v_read(i)
                if i >= 1: o += [waitlds("VR%d" % (i - 1))] + v_dma(i - 1 + cfg.vring)
        if k >= n - NF: o.append(frag_read(k - (n - NF)))
    return o

def period12():
    o = []
    late = []
    for i in range(cfg.s2_early // 8, 2): late += b_chunk(2, i, False)
    late += sum_publish()
    for it in late: o += it
    o += [waitlds("PW"), barrier(), dsr("ds_read_b128", V(vT, 4), x_rd, XSUM)]
    for f in range(32, 32 + NF): o.append(frag_read(f))
    sf = sum_fetch(); sf[-1] = [valu(e("v_rcp_f32"), V(mxb), V(vT))]
    sc = Sched(48, 96)
    for f in range(32 + NF, 56): sc.at(slot_last(f - NF), [frag_read(f)], prio=3)
    sc.spread(sf, 49, 51)
    sc.spread(epi(vO), 50, 80, prio=6)
    sc.at(81, [salu("s_add_u32", S(s_og), S(s_og), 16384)], prio=8)
    out, prof = sc.emit(lambda s: mfma_C(s, obase=vS))
    o += out
    o += stamp()
    for it in epi(vS, rlreg=mxb): o += it
    return o

def build():
    first, rest = setup()
    periods = [first + period0(rest)]
    profs = {}
    for p in range(1, 12):
        out, prof = period(p); periods.append(out); profs[p] = prof
        if p == 1: periods[-1] = periods[-1] + stamp()
    periods.append(stamp() + period12())
    stream = []
    for p, lst in enumerate(periods):
        for k, ins in enumerate(lst):
            ins.period = p
            if 2 <= p <= 11: ins.site = k
            stream.append(ins)
    fin = finalize(stream)
    txt = {}
    for ins in fin: txt.setdefault(ins.period, []).append(ins.text)
    for p in range(3, 12): assert txt[p] == txt[2], "period %d differs" % p
    body = txt[0] + txt[1] + [".p2align 3", "L_loop:"] + txt[2] + txt[12]
    tail = []
    if cfg.stamp:
        tail += ["s_waitcnt vmcnt(0)"] + [x.text for x in stamp()]
        n = stamp_n[0]
        tail += ["s_waitcnt lgkmcnt(0)", "s_lshl_b32 s3, s2, 7"]
        for j in range(16):
            src = s_st + j if j < 2 * n else s_st + 2 * (n - 1) + (j & 1)
            tail.append("v_mov_b32 v%d, s%d" % (j, src))
        tail += ["v_mov_b32 v16, 0", "s_cmp_lg_u32 s%d, 0" % s_wave, "s_cbranch_scc1 L_done", "s_mov_b64 exec, 1"]
        for j in range(4): tail.append("buffer_store_dwordx4 v[%d:%d], v16, s[%d:%d], s3 offen offset:%d" % (4 * j, 4 * j + 3, sW, sW + 3, 16 * j))
    body += tail + ["L_done:", "s_endpgm"]
    sys.stderr.write("loop instrs: %d; filler cost profile:\n%s\n total %d\n" % (len(txt[2]), " ".join(map(str, profs[2])), sum(profs[2])))
    nw = sum(1 for t in txt[2] if t.startswith("s_waitcnt")); nn = sum(1 for t in txt[2] if t.startswith("s_nop"))
    sys.stderr.write("loop waits %d nops %d\n" % (nw, nn))
    return wrap("\n".join("  " + t for t in body), 256, 256, LDS_TOTAL, 512, 256)

open(sys.argv[1], "w").write(build())
```

```python
import re

def R(kind, base, n=1):
    return [(kind, base + i) for i in range(n)]
def rn(kind, base, n=1):
    return "%s%d" % (kind, base) if n == 1 else "%s[%d:%d]" % (kind, base, base + n - 1)

class Ins:
    def __init__(self, text, kind, rd=(), wr=(), cost=4, tag=None, need=()):
        self.text = text; self.kind = kind
        self.rd = set(rd); self.wr = set(wr); self.cost = cost; self.tag = tag
        self.need = set(need)
        self.site = None
    def __repr__(self): return self.text

def opnd(x):
    if isinstance(x, tuple):
        if len(x) == 2: x = (x[0], x[1], 1)
        neg = ""
        k = x[0]
        if k.startswith("-"): neg = "-"; k = k[1:]
        return neg + rn(k, x[1], x[2]), R(k, x[1], x[2])
    return str(x), []

def V(n, c=1): return ("v", n, c)
def A(n, c=1): return ("a", n, c)
def S(n, c=1): return ("s", n, c)
def NV(n): return ("-v", n, 1)

TRANS = ("v_exp_f32", "v_rcp_f32", "v_log_f32", "v_rsq_f32", "v_sqrt_f32")
def valu(op, dst, *srcs, rmw=False, mods=""):
    dt, dr = opnd(dst)
    ts = [dt]; rd = []
    for s in srcs:
        t, r = opnd(s); ts.append(t); rd += r
    if rmw: rd += dr
    base = op.replace("_e64", "").replace("_e32", "")
    kind = "trans" if base in TRANS else "valu"
    return Ins("%s %s%s" % (op, ", ".join(ts), (" " + mods) if mods else ""), kind, rd, dr, 8 if kind == "trans" else 4)
def readfirstlane(sd, vs):
    return Ins("v_readfirstlane_b32 s%d, v%d" % (sd, vs), "rfl", R("v", vs), R("s", sd))
def permswap(a, b):
    return Ins("v_permlane32_swap_b32 v%d, v%d" % (a, b), "perm", R("v", a) + R("v", b), R("v", a) + R("v", b))
def mfma(dst, a, b, c, need=()):
    dt, dr = opnd(dst); at, ar = opnd(a); bt, br = opnd(b); ct, cr = opnd(c)
    big = len(dr) == 16
    i = Ins("%s %s, %s, %s, %s" % ("v_mfma_f32_32x32x16_bf16" if big else "v_mfma_f32_16x16x32_bf16", dt, at, bt, ct), "mfma", ar + br + cr, dr, 8, need=need)
    i.ab = set(ar + br); i.c = set(cr); i.big = big
    return i
def dsr(op, dst, addr, off=0, tag=None):
    dt, dr = opnd(dst)
    assert 0 <= off < 65536, off
    return Ins("%s %s, v%d offset:%d" % (op, dt, addr, off), "dsr", R("v", addr), dr, 4, tag)
def dsw(op, addr, src, off=0, tag=None, cost=8):
    st, sr = opnd(src)
    assert 0 <= off < 65536, off
    return Ins("%s v%d, %s offset:%d" % (op, addr, st, off), "dsw", R("v", addr) + sr, [], cost, tag)
def dma(voff, srd, soff, off=0, flags="", tag=None, cost=16):
    assert 0 <= off < 4096
    st, sr = opnd(soff)
    return Ins("buffer_load_dwordx4 v%d, s[%d:%d], %s offen offset:%d %s lds" % (voff, srd, srd + 3, st, off, flags), "dma",
               R("v", voff) + R("s", srd, 4) + sr + [("m0", 0)], [], cost, tag)
def vstore(src, voff, srd, soff, off=0, flags="", tag=None, cost=16):
    assert 0 <= off < 4096
    dt, dr = opnd(src); st, sr = opnd(soff)
    i = Ins("buffer_store_dwordx4 %s, v%d, s[%d:%d], %s offen offset:%d %s" % (dt, voff, srd, srd + 3, st, off, flags), "vst",
               dr + R("v", voff) + R("s", srd, 4) + sr, [], cost, tag)
    i.data = set(dr)
    return i
def salu(op, dst, *srcs):
    wr = []; rd = []; ts = []
    if dst is not None:
        if dst == "m0": ts.append("m0"); wr = [("m0", 0)]
        else:
            t, r = opnd(dst); ts.append(t); wr = r
    for s in srcs:
        if s == "m0": ts.append("m0"); rd.append(("m0", 0)); continue
        t, r = opnd(s); ts.append(t); rd += r
    return Ins("%s %s" % (op, ", ".join(ts)), "salu", rd, wr, 4)
def barrier(): return Ins("s_barrier", "bar", cost=4)
def waitlds(tag): return Ins("", "waitlds", cost=0, tag=tag)
def waitvm(tag): return Ins("", "waitvm", cost=0, tag=tag)
def raw(text, kind="raw", cost=4, rd=(), wr=()): return Ins(text, kind, rd, wr, cost)
def label(name): return Ins(name + ":", "label", cost=0)

def insert_waits(stream, forced):
    out = []; lq = []; vq = []; needed = {}
    pend_l = None; pend_v = None
    for ins in stream:
        nl = None; nv = None
        if ins.kind == "waitlds":
            idx = [i for i, e in enumerate(lq) if e[1] == ins.tag or ins.tag == "*"]
            if idx: nl = len(lq) - 1 - idx[-1]
        elif ins.kind == "waitvm":
            idx = [i for i, e in enumerate(vq) if e == ins.tag or ins.tag == "*"]
            if idx: nv = len(vq) - 1 - idx[-1]
        else:
            touch = ins.rd | ins.wr | ins.need
            idx = [i for i, e in enumerate(lq) if e[0] & touch]
            if idx: nl = len(lq) - 1 - idx[-1]
        if nl is not None: nl = min(nl, 15)
        if nv is not None: nv = min(nv, 63)
        if ins.site is not None:
            a, b = needed.get(ins.site, (None, None))
            mn = lambda x, y: x if y is None else (y if x is None else min(x, y))
            needed[ins.site] = (mn(a, nl), mn(b, nv))
            fa, fb = forced.get(ins.site, (None, None))
            nl = mn(nl, fa); nv = mn(nv, fb)
        if nl is not None:
            pend_l = nl if pend_l is None else min(pend_l, nl)
            del lq[:max(0, len(lq) - nl)]
        if nv is not None:
            pend_v = nv if pend_v is None else min(pend_v, nv)
            del vq[:max(0, len(vq) - nv)]
        if ins.kind in ("waitlds", "waitvm"):
            continue
        if pend_l is not None or pend_v is not None:
            t = "s_waitcnt" + (" vmcnt(%d)" % pend_v if pend_v is not None else "") + (" lgkmcnt(%d)" % pend_l if pend_l is not None else "")
            w = Ins(t, "wait"); w.site = None; w.period = getattr(ins, "period", None)
            out.append(w); pend_l = pend_v = None
        out.append(ins)
        if ins.kind == "dsr": lq.append((set(ins.wr), ins.tag))
        elif ins.kind == "dsw": lq.append((set(), ins.tag))
        elif ins.kind in ("dma", "vst"): vq.append(ins.tag)
    return out, needed

def states(ins):
    if ins.kind == "label": return 0
    if ins.kind == "nop": return ins.n + 1
    return 1

def required_gap(prev, cur):
    g = 0
    vw = prev.kind in ("valu", "trans", "perm", "rfl")
    if vw and cur.kind == "mfma" and (prev.wr & cur.rd): g = max(g, 2)
    if prev.kind == "mfma":
        raw_, ovl, war = (12, 10, 7) if prev.big else (8, 6, 3)
        if cur.kind == "mfma":
            if prev.wr & cur.ab: g = max(g, raw_)
            if prev.wr & cur.c and prev.wr != cur.c: g = max(g, ovl)
            if (prev.wr & cur.wr) and not (prev.wr == cur.c): g = max(g, raw_)
        elif cur.kind in ("valu", "trans", "perm", "rfl", "dsr", "dsw", "vst", "dma"):
            if prev.wr & (cur.rd | cur.wr): g = max(g, raw_)
            if cur.kind in ("valu", "trans", "perm") and (prev.c & cur.wr): g = max(g, war)
    if prev.kind == "trans" and cur.kind in ("valu", "perm", "rfl", "dsw", "vst", "mfma") and (prev.wr & cur.rd): g = max(g, 1)
    if vw and cur.kind == "perm" and (prev.wr & cur.rd): g = max(g, 2)
    if vw and "_dpp" in cur.text and (prev.wr & cur.rd): g = max(g, 2)
    if vw and cur.kind == "rfl" and (prev.wr & cur.rd): g = max(g, 1)
    if prev.kind == "rfl":
        if cur.kind in ("dma", "vst") and (prev.wr & cur.rd): g = max(g, 5)
        if cur.kind in ("valu", "trans") and (prev.wr & cur.rd): g = max(g, 2)
        if cur.kind == "salu" and (prev.wr & cur.rd): g = max(g, 4)
    if prev.kind == "salu" and cur.kind == "dma" and ("m0", 0) in prev.wr: g = max(g, 1)
    if prev.kind == "vst" and (prev.data & cur.wr): g = max(g, 2)
    return g

def insert_nops(stream, forced):
    out = []; needed = {}
    for ins in stream:
        need = 0; dist = 0
        for prev in reversed(out[-40:]):
            g = required_gap(prev, ins)
            if g > dist: need = max(need, g - dist)
            dist += states(prev)
            if dist >= 16: break
        if ins.site is not None:
            needed[ins.site] = max(needed.get(ins.site, 0), need)
            need = max(need, forced.get(ins.site, 0))
        while need > 0:
            k = min(need, 16)
            n = Ins("s_nop %d" % (k - 1), "nop"); n.n = k - 1; n.period = getattr(ins, "period", None)
            out.append(n); need -= k
        out.append(ins)
    return out, needed

def finalize(stream):
    fw = {}; fn = {}
    for it in range(10):
        s1, nw = insert_waits(stream, fw)
        s2, nn = insert_nops(s1, fn)
        mn = lambda x, y: x if y is None else (y if x is None else min(x, y))
        nfw = {k: (mn(v[0], fw.get(k, (None, None))[0]), mn(v[1], fw.get(k, (None, None))[1])) for k, v in nw.items()}
        nfn = {k: max(v, fn.get(k, 0)) for k, v in nn.items()}
        if nfw == fw and nfn == fn: return s2
        fw, fn = nfw, nfn
    raise RuntimeError("no fixed point")
```

```python
import sys, struct
from genlib import *
from asmlib import *

class Cfg:
    ld_flags = ""; q_flags = ""; st_flags = ""
    stamp = False
    vring = 5
    e_end = 40
    b_start = 5; b_end = 90
    gap = 8
    dma_slot = 1
    wdelay = 4
    xcost = 8
    stcost = 8
    pubdelay = 2
    verbose = False
    cs = 0
    cpf = 0
    tR1 = 1800
    tR3 = 3200
    tR5 = 4700
    nquiet = 22
    mgap = 24
    dma_sp = 8
    kstep = 4
    va_step = 370
    va_off = -2
    dgap = 64
cfg = Cfg()
for arg in sys.argv[2:]:
    k, v = arg.split("=")
    cur = getattr(cfg, k)
    setattr(cfg, k, type(cur)(v) if not isinstance(cur, bool) else v in ("1", "True"))

HEAD_BYTES = 196608
NU = 24
XM = [0, 256]; XS = [512, 768]
PBUF = 12288; QSLOT = 8448
QBASE = 2048
PB0 = QBASE + 8 * QSLOT
PBASE = PB0 - 3 * PBUF
POFF = 3 * PBUF
XBASE = PB0 + 2 * PBUF
XW = 17408
LDS_TOTAL = XBASE + 4 * XW
assert LDS_TOTAL <= 163840
KRING = 4
KSLOT = [9216, 13312, 0, 4096]
VSLOT = [9216 + 2048 * i for i in range(4)]
vS = 0; vO = 48; vF = 64; vONES = 96; vSUMD = 100; vT = 104
q_rd, p_rd, p_wr, x_rd, x_wr, dma_voff, o_voff = 108, 109, 110, 111, 112, 113, 114
mx, mc, lnext, rl = 115, 116, 117, 118
v_voff, v_rd0, v_rd1 = 119, 120, 121
k_voff0, k_voff1, k_rd0, k_rd1 = 122, 123, 124, 125
tmp = 48
def Kfrag(kt, ks): return A(kt * 32 + ks * 4, 4)
def Vfrag(s, dt): return A(192 + s * 16 + dt * 4, 4) if s < 4 else V(128 + (s - 4) * 16 + dt * 4, 4)
def Sb(u): return vS + (u % 2) * 24
def Freg(blk, i): return vF + (blk % 2) * 16 + i * 4
sQ, sK, sV, sO, sW = 8, 12, 16, 20, 40
s_c, s_wave, s_qg, s_og, s_qoff, s_wq, s_dm, s_t0, s_t1, s_t2 = 24, 25, 26, 27, 28, 29, 30, 31, 32, 33
s_xw, s_big, s_qd = 34, 36, 37
s_st = 48
CONST = struct.unpack("<I", struct.pack("<f", 1.4426950408889634 / 16.0))[0]

stamp_n = [0]
def stamp():
    if not cfg.stamp: return []
    i = stamp_n[0]; stamp_n[0] += 1
    assert i < 14
    return [raw("s_memrealtime s[%d:%d]" % (s_st + 2 * i, s_st + 2 * i + 1))]
def cstamp(i):
    if not cfg.stamp: return []
    return [raw("s_memtime s[%d:%d]" % (s_st + 2 * i, s_st + 2 * i + 1))]

def setup():
    o = []; a = o.append
    a(raw("s_cmp_ge_u32 s2, 256")); a(raw("s_cbranch_scc1 L_done"))
    o += stamp()
    a(raw("s_load_dwordx4 s[4:7], s[0:1], 0"))
    a(raw("s_load_dwordx4 s[44:47], s[0:1], 16"))
    if cfg.stamp: a(raw("s_load_dwordx2 s[38:39], s[0:1], 40"))
    a(salu("s_and_b32", S(3), S(2), 7)); a(salu("s_lshr_b32", S(s_t0), S(2), 3))
    a(salu("s_lshl_b32", S(3), S(3), 5)); a(salu("s_add_u32", S(3), S(3), S(s_t0)))
    a(salu("s_lshr_b32", S(s_t0), S(3), 1))
    a(salu("s_mul_i32", S(s_t1), S(3), HEAD_BYTES)); a(salu("s_mul_i32", S(s_t2), S(s_t0), HEAD_BYTES))
    L, W, Q, G = tmp, tmp + 1, tmp + 2, tmp + 3
    t0, t1, t2, t3 = tmp + 4, tmp + 5, tmp + 6, tmp + 7
    a(valu("v_lshrrev_b32", V(W), 6, V(0))); a(valu("v_and_b32", V(L), 63, V(0)))
    a(valu("v_and_b32", V(Q), 15, V(0))); a(valu("v_bfe_u32", V(G), V(0), 4, 2))
    a(readfirstlane(s_wave, W))
    a(valu("v_and_b32", V(t0), 31, V(L))); a(valu("v_lshrrev_b32", V(t1), 5, V(L)))
    a(valu("v_xor_b32", V(t0), V(t0), V(t1))); a(valu("v_lshlrev_b32", V(t0), 4, V(t0)))
    a(valu("v_lshl_add_u32", V(t0), V(t1), 9, V(t0))); a(valu("v_lshl_add_u32", V(dma_voff), V(W), 11, V(t0)))
    a(valu("v_lshrrev_b32", V(t0), 3, V(L))); a(valu("v_and_b32", V(t1), 7, V(L)))
    a(valu("v_xor_b32", V(t2), V(t1), V(G))); a(valu("v_lshlrev_b32", V(t2), 4, V(t2)))
    a(valu("v_lshl_add_u32", V(t2), V(t0), 9, V(t2)))
    a(valu("v_mul_u32_u24", V(k_voff0), 49152, V(W))); a(valu("v_add_u32", V(k_voff0), V(k_voff0), V(t2)))
    a(valu("v_xor_b32", V(k_voff1), 64, V(k_voff0)))
    if cfg.cpf:
        a(raw("s_getpc_b64 s[92:93]"))
        a(salu("s_lshr_b32", S(94), S(2), 3)); a(salu("s_lshl_b32", S(94), S(94), 10))
        a(valu("v_lshlrev_b32", V(t3), 2, V(0))); a(valu("v_add_u32", V(t3), S(94), V(t3)))
        a(valu("v_min_u32", V(t3), cfg.cpf * 1024 - 4, V(t3)))
        a(Ins("global_load_dword v255, v%d, s[92:93]" % t3, "dma", R("v", t3), [], 8, "CPF"))
    a(raw("s_waitcnt lgkmcnt(0)"))
    def srd(d, p, off):
        a(salu("s_add_u32", S(d), S(p), S(off))); a(salu("s_addc_u32", S(d + 1), S(p + 1), 0))
        a(salu("s_mov_b32", S(d + 2), HEAD_BYTES)); a(salu("s_mov_b32", S(d + 3), "0x20000"))
    srd(sQ, 4, s_t1); srd(sK, 6, s_t2)
    a(salu("s_mul_i32", S(s_wq), S(s_wave), 2 * 1056)); a(salu("s_add_u32", S(s_wq), S(s_wq), QBASE))
    a(salu("s_mul_i32", S(s_xw), S(s_wave), XW)); a(salu("s_add_u32", S(s_xw), S(s_xw), XBASE))
    first = o
    o = []; a = o.append
    srd(sV, 44, s_t2); srd(sO, 46, s_t1)
    if cfg.stamp:
        a(salu("s_mov_b32", S(sW), S(38))); a(salu("s_mov_b32", S(sW + 1), S(39)))
        a(salu("s_mov_b32", S(sW + 2), 268435456)); a(salu("s_mov_b32", S(sW + 3), "0x20000"))
    a(salu("s_mov_b32", S(s_c), "0x%08x" % CONST)); a(salu("s_mov_b32", S(s_big), HEAD_BYTES))
    a(valu("v_and_b32", V(t2), 1, V(G))); a(valu("v_lshlrev_b32", V(t2), 2, V(t2))); a(valu("v_xor_b32", V(t2), V(t1), V(t2)))
    a(valu("v_lshlrev_b32", V(t2), 4, V(t2))); a(valu("v_lshl_add_u32", V(t2), V(t0), 9, V(t2)))
    a(valu("v_lshl_add_u32", V(v_voff), V(W), 7, V(t2)))
    a(valu("v_lshrrev_b32", V(t0), 1, V(Q))); a(valu("v_mul_u32_u24", V(t0), 1056, V(t0)))
    a(valu("v_and_b32", V(t1), 1, V(Q))); a(valu("v_lshl_add_u32", V(t0), V(t1), 9, V(t0)))
    a(valu("v_xor_b32", V(t1), V(t1), V(G))); a(valu("v_lshl_add_u32", V(t0), V(t1), 4, V(t0)))
    a(valu("v_add_u32", V(q_rd), QBASE, V(t0)))
    a(valu("v_lshlrev_b32", V(t0), 4, V(L))); a(valu("v_add_u32", V(p_rd), PBASE, V(t0)))
    a(valu("v_mul_u32_u24", V(t1), 3072, V(W))); a(valu("v_add_u32", V(p_wr), V(p_rd), V(t1)))
    a(valu("v_lshlrev_b32", V(x_rd), 4, V(Q))); a(valu("v_lshl_add_u32", V(x_wr), V(W), 2, V(x_rd)))
    a(valu("v_lshlrev_b32", V(t0), 9, V(Q))); a(valu("v_lshl_add_u32", V(t0), V(G), 4, V(t0)))
    a(valu("v_lshl_add_u32", V(o_voff), V(W), 7, V(t0)))
    a(valu("v_lshrrev_b32", V(t0), 1, V(Q))); a(valu("v_xor_b32", V(t0), V(t0), V(G)))
    a(valu("v_lshlrev_b32", V(t0), 4, V(t0))); a(valu("v_lshl_add_u32", V(t0), V(Q), 7, V(t0)))
    a(valu("v_xor_b32", V(t1), 64, V(t0)))
    a(valu("v_add_u32", V(k_rd0), S(s_xw), V(t0))); a(valu("v_add_u32", V(k_rd1), S(s_xw), V(t1)))
    a(valu("v_lshrrev_b32", V(t0), 2, V(Q))); a(valu("v_lshl_add_u32", V(t0), V(G), 2, V(t0)))
    a(valu("v_and_b32", V(t1), 3, V(Q))); a(valu("v_bfe_u32", V(t2), V(t0), 1, 1)); a(valu("v_lshl_add_u32", V(t1), V(t2), 2, V(t1)))
    a(valu("v_lshlrev_b32", V(t1), 4, V(t1))); a(valu("v_lshl_add_u32", V(t1), V(t0), 7, V(t1)))
    a(valu("v_xor_b32", V(t2), 64, V(t1)))
    a(valu("v_add_u32", V(v_rd0), S(s_xw), V(t1))); a(valu("v_add_u32", V(v_rd1), S(s_xw), V(t2)))
    for i in range(4): a(valu("v_mov_b32", V(vONES + i), "0x3f803f80"))
    return first, o

def q_dma_const(u):
    o = []
    for jj in range(2):
        o.append([salu("s_add_u32", "m0", S(s_wq), (u % 8) * QSLOT + jj * 32), salu("s_mov_b32", S(s_t0), u * 8192),
                  dma(dma_voff, sQ, S(s_t0), jj * 1024, cfg.q_flags, tag="Q%d" % u, cost=8)])
    return o
def k_dma(u):
    j, kg = divmod(u, 3)
    off = KSLOT[u % KRING]
    o = []
    for pp in range(4):
        o.append([salu("s_add_u32", "m0", S(s_xw), off + pp * 1024), salu("s_mov_b32", S(s_t0), kg * 16384 + pp * 4096 + j * 128),
              dma(k_voff1 if pp & 1 else k_voff0, sK, S(s_t0), 0, cfg.ld_flags, tag="K%d" % u, cost=8)])
    return o
def k_read(u):
    j, kg = divmod(u, 3)
    off = KSLOT[u % KRING]
    o = [waitvm("K%d" % u)]
    for u2 in range(2):
        for ks in range(2):
            o.append(dsr("ds_read_b128", Kfrag(2 * kg + u2, 2 * j + ks), k_rd1 if ks else k_rd0, off + u2 * 2048, tag="KR%d" % u))
    return o
s_pw = 90
vP0, vP1, vQ0, vQ1 = 232, 233, 234, 235
VS = {"X0": (s_xw, 9216, (v_rd0, v_rd1), 99), "X1": (s_xw, 11264, (v_rd0, v_rd1), 99),
      "X2": (s_xw, 13312, (v_rd0, v_rd1), 99), "X3": (s_xw, 15360, (v_rd0, v_rd1), 99),
      "B0": (s_pw, POFF, (vP0, vP1), 9), "B1": (s_pw, POFF + PBUF, (vP0, vP1), 10),
      "Q0": (s_wq, 0, (vQ0, vQ1), 16), "Q1": (s_wq, QSLOT, (vQ0, vQ1), 17), "Q2": (s_wq, 2 * QSLOT, (vQ0, vQ1), 18)}
v_free = []; v_where = {}; v_next = [0]
def v_issue(newfree=()):
    v_free.extend(newfree)
    o = []
    while v_next[0] < 24:
        i = v_next[0]
        ok = [x for x in v_free if VS[x][3] >= i]
        if not ok: break
        ok.sort(key=lambda x: VS[x][3])
        x = ok[0]; v_free.remove(x); v_where[i] = x; v_next[0] += 1
        sb, off, _, _ = VS[x]
        for pp in range(2):
            o.append([salu("s_add_u32", "m0", S(sb), off + pp * 1024), salu("s_mov_b32", S(s_t0), i * 8192 + pp * 4096),
                  dma(v_voff, sV, S(s_t0), 0, cfg.ld_flags, tag="V%d" % i, cost=8)])
    return o
def v_read(i):
    s, jj = divmod(i, 2)
    _, off, regs, _ = VS[v_where[i]]
    o = [waitvm("V%d" % i)]
    for dt in range(4):
        k, b, _ = Vfrag(s, dt)
        o.append(dsr("ds_read_b64_tr_b16", (k, b + 2 * jj, 2), regs[1] if dt >= 2 else regs[0], off + 8 * (dt % 2), tag="VR%d" % i))
    return o
def dummy_st():
    return [vstore(V(vT, 4), o_voff, sO, S(s_big), 0, "", tag="D")]

def q_reads(k, b):
    u = k + 1
    return [dsr("ds_read_b128", V(Freg(5 * k + b, i), 4), q_rd, (u % 2) * QSLOT + (4 * b + i) * 64) for i in range(4)]
def p_reads(k, c):
    u = k - 1
    return [dsr("ds_read_b128", V(Freg(5 * k + 2 + c, i), 4), p_rd, POFF + (u % 2) * PBUF + (4 * c + i) * 1024) for i in range(4)]
def mfma_slot(k, slot, obase=vO):
    if slot < 48:
        b, r = divmod(slot, 24); kt, i = divmod(r, 4); ks = 4 * b + i
        d = V(Sb(k + 1) + kt * 4, 4)
        need = R("v", Freg(5 * k + b, 0), 16) if r == 0 else ()
        return mfma(d, Kfrag(kt, ks), V(Freg(5 * k + b, i), 4), d if ks else 0, need=need)
    c, r = divmod(slot - 48, 16); dt, i = divmod(r, 4); s = 4 * c + i
    d = V(obase + dt * 4, 4)
    need = R("v", Freg(5 * k + 2 + c, 0), 16) if r == 0 else ()
    return mfma(d, Vfrag(s, dt), V(Freg(5 * k + 2 + c, i), 4), d if s else 0, need=need)

def b_chunk(u, i, sb=None, poff=None, mcr=mc, wreg=p_wr):
    b = (Sb(u) if sb is None else sb) + 8 * i
    fma = lambda r: valu("v_fma_f32", V(b + r), V(b + r), S(s_c), NV(mcr))
    ex = lambda r: valu("v_exp_f32", V(b + r), V(b + r))
    cvt = lambda j: valu("v_cvt_pk_bf16_f32", V(b + j), V(b + 2 * j), V(b + 2 * j + 1))
    po = POFF + (u % 2) * PBUF if poff is None else poff
    seq = [fma(0), fma(1), ex(0), fma(2), fma(3), ex(1), ex(2), fma(4), cvt(0), ex(3), fma(5), fma(6), ex(4), fma(7), cvt(1), ex(5), ex(6), ex(7), cvt(2), cvt(3),
           dsw("ds_write_b128", wreg, V(b, 4), po + i * 1024, tag="PW"),
           mfma(V(vSUMD, 4), V(vONES, 4), V(b, 4), V(vSUMD, 4) if i else 0)]
    return [[x] for x in seq]
def max_ops(u, sb=None, dst=mx):
    b = Sb(u) if sb is None else sb
    o = [valu("v_max3_f32", V(dst), V(b), V(b + 1), V(b + 2))]
    i = 3
    while i < 24:
        if i + 1 < 24: o.append(valu("v_max3_f32", V(dst), V(dst), V(b + i), V(b + i + 1))); i += 2
        else: o.append(valu("v_max_f32", V(dst), V(dst), V(b + i))); i += 1
    return [[x] for x in o]
def max_publish(u, src=mx, off=None):
    off = XM[u % 2] if off is None else off
    return [[dsw("ds_write_b32", x_wr, V(src), off, tag="PW", cost=cfg.xcost)], [dsw("ds_max_f32", x_wr, V(src), off, tag="PW", cost=cfg.xcost)]]
def max_fetch():
    return [[valu("v_max3_f32", V(mc), V(vT), V(vT + 1), V(vT + 2))], [valu("v_max_f32", V(mc), V(mc), V(vT + 3))],
            [valu("v_mul_f32", V(mc), S(s_c), V(mc))]]
def sum_publish(u): return [[dsw("ds_write_b32", x_wr, V(vSUMD), XS[u % 2], tag="PW", cost=cfg.xcost)]]
def sum_fetch():
    return [[valu("v_add_f32", V(vSUMD), V(vSUMD), V(vSUMD + 1))], [valu("v_add_f32", V(vSUMD + 2), V(vSUMD + 2), V(vSUMD + 3))],
            [valu("v_add_f32", V(lnext), V(vSUMD), V(vSUMD + 2))]]
def epi(obase, u, rlreg=rl, sched=False, soff=s_og):
    o = []
    for h in range(2):
        b = obase + h * 8
        mul = lambda r: valu("v_mul_f32", V(b + r), V(rlreg), V(b + r))
        cvt = lambda j: valu("v_cvt_pk_bf16_f32", V(b + j), V(b + 2 * j), V(b + 2 * j + 1))
        o += [mul(0), mul(1), mul(2), mul(3), cvt(0), mul(4), mul(5), cvt(1), mul(6), mul(7), cvt(2), cvt(3),
              vstore(V(b, 4), o_voff, sO, S(soff), h * 64, cfg.st_flags, tag="ST", cost=cfg.stcost)]
    o = [[x] for x in o]
    if sched:
        w = cfg.wdelay
        o = o[:12] + o[13:13 + w] + o[12:13] + o[13 + w:25] + [cfg.pubdelay] + o[25:]
    return o

class Sched:
    def __init__(self, n0, n1, gap=None):
        self.n0 = n0; self.n1 = n1; self.gap = gap or cfg.gap
        self.pre = {s: [] for s in range(n0, n1)}; self.post = {s: [] for s in range(n0, n1)}
        self.streams = []
    def pin(self, slot, item, post=False):
        slot = max(self.n0, min(self.n1 - 1, slot))
        (self.post if post else self.pre)[slot].append(item)
    def stream(self, items, start, end, earliest=None):
        self.streams.append({"items": list(items), "start": start, "end": min(end, self.n1 - 1), "i": 0, "earliest": earliest or {}})
    def emit(self, mf):
        out = []; prof = []
        cost = lambda it: 0 if isinstance(it, int) else sum(i.cost for i in it)
        for s in range(self.n0, self.n1):
            m = mf(s)
            if m is not None: out.append(m)
            budget = self.gap; used = 0
            for it in self.pre[s]:
                out += it; budget -= cost(it); used += cost(it)
            budget -= sum(cost(it) for it in self.post[s])
            while True:
                cands = []
                for st in self.streams:
                    while st["i"] < len(st["items"]) and isinstance(st["items"][st["i"]], int):
                        st["start"] = max(st["start"], s + st["items"][st["i"]]); st["i"] += 1
                    if st["i"] >= len(st["items"]) or s < st["start"] or s < st["earliest"].get(st["i"], -1): continue
                    rem = sum(cost(x) for x in st["items"][st["i"]:])
                    slack = (st["end"] - s) * self.gap - rem
                    cands.append((slack, st))
                if not cands: break
                cands.sort(key=lambda x: x[0])
                pick = None
                for slack, st in cands:
                    c = cost(st["items"][st["i"]])
                    if c <= budget or (budget >= self.gap and c > budget) or st["items"][st["i"]][0].kind == "mfma" and budget <= 0:
                        pick = st; break
                if pick is None:
                    slack, st = cands[0]
                    if slack < 0: pick = st
                if pick is None: break
                it = pick["items"][pick["i"]]; pick["i"] += 1
                out += it; used += cost(it)
                if it[0].kind == "mfma": budget = self.gap
                else: budget -= cost(it)
            for it in self.post[s]:
                out += it; used += cost(it)
            prof.append(used)
        for st in self.streams:
            for it in st["items"][st["i"]:]:
                if not isinstance(it, int): out += it
        return out, prof

MEMK = ("dsr", "dsw", "dma", "vst")
class It:
    def __init__(self, ins, after=(), ev=None, quiet=None):
        self.ins = ins if isinstance(ins, list) else [ins]
        self.after = list(after); self.ev = ev; self.quiet = quiet
        self.mf = bool(self.ins) and self.ins[0].kind == "mfma"
        self.mem = any(i.kind in MEMK for i in self.ins)
    def cost(self, shadow):
        c = 0; first = True
        for i in self.ins:
            if i.kind in MEMK:
                w128 = i.text.startswith("ds_write_b128") or i.kind == "vst"
                c += (16 if w128 else 4) if shadow else ((26 if w128 else 4) + (8 if first else 0))
                first = False
            else: c += i.cost
        return c
class TSched:
    def __init__(self, t0=0, events=None):
        self.t = t0; self.tm = -100; self.ev = events if events is not None else {}
        self.streams = []; self.out = []; self.mgap = cfg.mgap; self.mev = "B7"; self.quiet = False; self.lastmem = False
    def add(self, items, prio):
        l = []
        for x in items:
            if isinstance(x, int): l.append(x)
            elif isinstance(x, It): l.append(x)
            else: l.append(It(x))
        self.streams.append({"p": prio, "l": l, "i": 0, "nb": 0})
    def ready_at(self, st):
        while st["i"] < len(st["l"]) and isinstance(st["l"][st["i"]], int):
            st["nb"] = max(st["nb"], self.t + st["l"][st["i"]]); st["i"] += 1
        if st["i"] >= len(st["l"]): return None
        it = st["l"][st["i"]]
        r = st["nb"]
        for e, d in it.after:
            if e not in self.ev: return float("inf")
            r = max(r, self.ev[e] + d)
        if it.mf: r = max(r, self.tm + (self.mgap if (st["p"] == -1 and self.mev not in self.ev) else 16))
        if it.mem and self.quiet: return float("inf")
        return r
    def run(self):
        INF = float("inf")
        while True:
            live = [(self.ready_at(st), st) for st in self.streams]
            live = [(r, st) for r, st in live if r is not None]
            if not live: break
            rdy = sorted([(st["p"], id(st), st) for r, st in live if r <= self.t], key=lambda x: x[:1])
            main = [r for r, st in live if st["p"] == -1]
            mnext = main[0] if main else INF
            shadow = (self.t - self.tm <= 8) or self.lastmem
            pick = None
            for p, _, st in rdy:
                it = st["l"][st["i"]]
                if p == -1: pick = st; break
                if it.mem and not shadow and mnext - self.t <= 32 and any(not s2["l"][s2["i"]].mem for _, _, s2 in rdy):
                    continue
                if mnext != INF and mnext > self.t and self.t + it.cost(shadow) > mnext + 4 and mnext - self.t < 8:
                    continue
                pick = st; break
            if pick is None:
                c = [r for r, st in live if r > self.t and r != INF]
                if not c:
                    assert rdy, "deadlock: %s" % [st["l"][st["i"]].after for r, st in live]
                    pick = rdy[0][2]
                else:
                    self.t = min(c); continue
            it = pick["l"][pick["i"]]; pick["i"] += 1
            if it.mf: self.tm = self.t
            if it.ev: self.ev[it.ev] = self.t
            if it.quiet is not None: self.quiet = it.quiet
            self.out += it.ins; self.t += it.cost(shadow); self.lastmem = it.mem
        o = self.out; self.out = []; self.streams = []
        return o

def q_advance():
    return [[salu("s_add_u32", S(s_t2), S(s_qoff), 2 * QSLOT)],
            [salu("s_cmp_eq_u32", None, S(s_t2), 8 * QSLOT), salu("s_cselect_b32", S(s_t2), 0, S(s_t2))],
            [salu("s_sub_u32", S(s_qd), S(s_t2), S(s_qoff))], [salu("s_mov_b32", S(s_qoff), S(s_t2))],
            [valu("v_add_u32", V(q_rd), S(s_qd), V(q_rd))]]

def interval(k, loop=False, special=None):
    hasA = k + 1 < NU; hasC = k >= 1; hasB = k < NU and not special; hasE = k >= 2 and not special
    n0 = 0 if hasA else 48
    n1 = 96 if hasC else 48
    sc = Sched(n0, n1)
    obase = vO if k != NU - 1 else vS
    ebase = vO if k != NU else vS
    sc_ = lambda x: x
    head = []
    if hasB: head.append(dsr("ds_read_b128", V(vT, 4), x_rd, XM[k % 2]))
    if k >= 1: head.append(dsr("ds_read_b128", V(vSUMD, 4), x_rd, XS[(k - 1) % 2]))
    sc.pin(n0, head)
    if hasA: sc.stream([[x] for x in q_reads(k, 1)], 1 if not special else special['b1_start'], 12 if not special else special['b1_start'] + 4)
    if hasC:
        if hasA: sc.stream([[x] for x in p_reads(k, 0)], 25, 38)
        sc.stream([[x] for x in p_reads(k, 1)], 49, 55)
        sc.stream([[x] for x in p_reads(k, 2)], 65, 71)
    if k + 2 < NU or loop:
        if hasC: sc.stream([[x] for x in q_reads(k + 1, 0)], 81, 87)
    elif k + 1 <= NU:
        pass
    b0 = n0 + cfg.b_start
    bend = min(cfg.b_end, n1 - 5)
    sf = sum_fetch() if k >= 1 else []
    if hasB:
        c0, c1, c2 = b_chunk(k, 0), b_chunk(k, 1), b_chunk(k, 2)
        w = cfg.wdelay
        items = max_fetch() + sf + c0[:-2] + c1[:w] + c0[-2:-1] + c1[w:w + 2] + c0[-1:] + c1[w + 2:-2] + c2[:w] + c1[-2:-1] + c2[w:w + 2] + c1[-1:] + c2[w + 2:-2]
        items += [cfg.pubdelay] + c2[-1:] + c2[-2:-1] + [4] + sum_publish(k)
        sc.stream(items, b0, bend)
    else:
        sc.stream(sf, b0, b0 + 4)
    if hasE:
        e_end = cfg.e_end if hasA else 80
        sc.stream(epi(ebase, k - 2, sched=True) + [[salu("s_add_u32", S(s_og), S(s_og), 8192)]], n0 + 3, e_end)
        sc.stream([[valu("v_rcp_f32", V(rl), V(lnext))]], e_end + 1, e_end + 6)
    elif special:
        sc.stream([[valu("v_rcp_f32", V(rl), V(lnext))]], 50, 60)
    if hasA:
        mo = max_ops(k + 1)
        ear = {j: 27 + 4 * min(5, (2 + 2 * j) // 4) + 4 for j in range(len(mo))}
        if n1 == 48:
            sc.tail = [[x] for x in q_reads(k + 1, 0)] + mo + max_publish(k + 1)
        else:
            mp = max_publish(k + 1)
            sc.stream(mo + [cfg.pubdelay] + mp[:1] + [1] + mp[1:], 30, bend, earliest=ear)
    if loop:
        if k % 2 == 0: sc.pin(cfg.dma_slot, [salu("s_add_u32", S(s_dm), S(s_wq), S(s_qoff))])
        for jj in range(2):
            off = (k % 2) * QSLOT + jj * 32
            sc.pin(cfg.dma_slot + 1 + cfg.dma_sp * jj, [salu("s_add_u32", "m0", S(s_dm), off) if off else salu("s_mov_b32", "m0", S(s_dm))], post=True)
            sc.pin(cfg.dma_slot + 2 + cfg.dma_sp * jj, [dma(dma_voff, sQ, S(s_qg), jj * 1024, cfg.q_flags, tag="Q%d" % (k + 8), cost=8)])
        sc.stream([[salu("s_add_u32", S(s_qg), S(s_qg), 8192)]], cfg.dma_slot + cfg.dma_sp + 4, 60)
    if k % 2 == 0 and (k + 2 < NU or loop): sc.stream(q_advance(), 14 if hasC else 14, 70 if hasC else 24)
    if special:
        for st in special["streams"]: sc.stream(*st)
        for s, it, post in special["pins"]: sc.pin(s, it, post)
    out, prof = sc.emit(lambda s: mfma_slot(k, s, obase))
    for it in getattr(sc, "tail", []): out += it
    if k < NU:
        out += [waitlds("PW")]
        if k + 3 < NU or loop: out.append(waitvm("Q%d" % (k + 3)))
        if loop and k % 2 == 1:
            out += [salu("s_cmp_lt_u32", None, S(s_og), 20 * 8192), barrier(), raw("s_cbranch_scc1 L_loop", "branch")]
        else:
            out.append(barrier())
        if k + 2 >= NU and not loop: out += p_reads(k + 1, 0)
    return out, prof

SH = [0, 24, 48, 72, 128, 152, 176, 200]
OH = [0, 16, 32, 48, 64, 80]
MCS = 224; PM = 100
RLH = [116, 122, 123, 124, 125, 126]
p_wr2, p_rd2 = 127, 115
XSH = [0, 256, 1024, 1280, 1536, 1792, XS[0], XS[1]]
NC = 6
s_e = [84, 85, 86, 87, 88, 89]

def flat(items):
    o = []
    for it in items:
        if not isinstance(it, int): o += it
    return o

def phase_K(rest):
    o = []
    for u in range(8): o += flat(q_dma_const(u))
    for u in range(KRING): o += flat(k_dma(u))
    o += rest
    for u in range(6): o.append(salu("s_mov_b32", S(s_e[u]), u * 8192))
    o += [salu("s_mul_i32", S(s_pw), S(s_wave), 3072), salu("s_add_u32", S(s_pw), S(s_pw), PBASE)]
    def service(u):
        pre = k_read(u)
        post = []
        if u + KRING < 12: post += k_dma(u + KRING)
        if u == 7: post += v_issue(["B0", "B1"])
        if u == 8: post += v_issue(["X0", "X1"])
        if u == 9: post += v_issue(["X2", "X3"])
        if post: post[0] = [waitlds("KR%d" % u)] + post[0]
        return pre, post
    def pin_post(sc, sl, b, step=cfg.kstep):
        for x, it in enumerate(b): sc.pin(sl + step * x, it)
    for u in range(3):
        a, b = service(u); o += a
        if u == 0: o += [barrier()] + stamp()
        else: o += flat(pb)
        pb = b
    o += flat(pb)
    passes = [(0, range(6)), (1, range(6)), (2, range(6)), (3, range(4)), (3, range(4, 6))]
    npair = 0
    def qpair(n):
        p, u = divmod(n, 8)
        j = passes[p][0]
        return [dsr("ds_read_b128", V(224 + (n % 4) * 8 + 4 * i, 4), q_rd, u * QSLOT + (2 * j + i) * 64) for i in range(2)]
    for n in range(3): o += qpair(n)
    for p, (j, kts) in enumerate(passes):
        mf = []; per = 2 * len(kts)
        for u in range(8):
            n = p * 8 + u
            for kt in kts:
                for i in range(2):
                    ks = 2 * j + i; d = V(SH[u] + kt * 4, 4)
                    mf.append(mfma(d, Kfrag(kt, ks), V(224 + (n % 4) * 8 + 4 * i, 4), d if ks else 0))
        sc = Sched(0, len(mf))
        for u in range(8):
            n = p * 8 + u + 3
            if n < 40: sc.pin(u * per, qpair(n))
        if p < 2:
            for kg in range(3):
                a, b = service(3 * (p + 1) + kg); sc.pin(8 + 32 * kg, a); pin_post(sc, 14 + 32 * kg, b, cfg.kstep if len(b) <= 4 else 3)
        elif p == 2:
            for kg in range(2):
                a, b = service(9 + kg); sc.pin(20 + 40 * kg, a); pin_post(sc, 26 + 40 * kg, b)
        elif p == 3:
            a, b = service(11); sc.pin(56, a)
            items = []; ear = {}
            for u in range(7):
                b0 = SH[u]
                ops = [valu("v_max3_f32", V(PM + u), V(b0), V(b0 + 1), V(b0 + 2))]
                for i in range(3, 15, 2): ops.append(valu("v_max3_f32", V(PM + u), V(PM + u), V(b0 + i), V(b0 + i + 1)))
                for x in ops: ear[len(items)] = 8 * u + 8 + 3; items.append([x])
            sc.stream(items, 0, 63, ear)
        else:
            items = []; ear = {}
            b0 = SH[7]; u = 7
            ops = [valu("v_max3_f32", V(PM + u), V(b0), V(b0 + 1), V(b0 + 2))]
            for i in range(3, 15, 2): ops.append(valu("v_max3_f32", V(PM + u), V(PM + u), V(b0 + i), V(b0 + i + 1)))
            items += [[x] for x in ops]
            tail = []
            for u in range(8):
                b0 = SH[u]
                ops = [valu("v_max3_f32", V(PM + u), V(PM + u), V(b0 + i), V(b0 + i + 1)) for i in range(15, 23, 2)]
                ops.append(valu("v_max_f32", V(PM + u), V(PM + u), V(b0 + 23)))
                ops += flat(max_publish(u, src=PM + u, off=u * 256))
                if u < 6:
                    for x in ops: ear[len(items)] = 4 * u + 4 + 3; items.append([x])
                else: tail += ops
            sc.stream(items, 0, 31, ear)
        out, _ = sc.emit(lambda s: mf[s])
        if p in (0, 2, 4) and cfg.cs != 2: o += stamp()
        o += out
        if p == 4: o += tail
    o += [waitlds("PW"), barrier()]
    return o

def hb(u):
    if u < 3: wreg, po = p_wr2, u * 3072
    elif u < 6: wreg, po = p_wr, (u - 3) * PBUF
    else: wreg, po = p_wr, POFF + (u % 2) * PBUF
    c = [b_chunk(u, i, sb=SH[u], poff=po, mcr=MCS + u, wreg=wreg) for i in range(3)]
    w = cfg.wdelay
    return c[0][:-2] + c[1][:w] + c[0][-2:] + c[1][w:-2] + c[2][:w] + c[1][-2:] + c[2][w:]
def hsum(u, src=vSUMD): return [[dsw("ds_write_b32", x_wr, V(src), XSH[u], tag="PW", cost=cfg.xcost)]]
def hp_read(u, s, dst):
    if u < 3:
        w2, i = divmod(s, 3)
        return dsr("ds_read_b128", V(dst, 4), p_rd2, w2 * XW + u * 3072 + i * 1024)
    return dsr("ds_read_b128", V(dst, 4), p_rd, (u - 3) * PBUF + s * 1024)

def phase_V():
    o = []
    dests = [100, 104] + [236 + 4 * i for i in range(5)]
    for u in range(7): o.append(dsr("ds_read_b128", V(dests[u], 4), x_rd, u * 256))
    o += [valu("v_add_u32", V(p_rd2), XBASE - PBASE, V(p_rd)),
          salu("s_sub_u32", S(s_t1), S(s_xw), PBASE), valu("v_add_u32", V(p_wr2), S(s_t1), V(p_rd)),
          salu("s_sub_u32", S(s_t1), S(s_pw), S(s_xw)), salu("s_sub_u32", S(s_t2), S(s_wq), S(s_xw)),
          valu("v_add_u32", V(vP0), S(s_t1), V(v_rd0)), valu("v_add_u32", V(vP1), S(s_t1), V(v_rd1)),
          valu("v_add_u32", V(vQ0), S(s_t2), V(v_rd0)), valu("v_add_u32", V(vQ1), S(s_t2), V(v_rd1))]
    def red(u, d):
        return [valu("v_max3_f32", V(MCS + u), V(d), V(d + 1), V(d + 2)), valu("v_max_f32", V(MCS + u), V(MCS + u), V(d + 3)),
                valu("v_mul_f32", V(MCS + u), S(s_c), V(MCS + u))]
    ev = {"T0": 0}
    ts = TSched(100, ev)
    vb = []
    for u in range(7):
        vb += [[x] for x in red(u, dests[u])]
        if u == 1: vb.append([dsr("ds_read_b128", V(104, 4), x_rd, 7 * 256)])
    vb += [[x] for x in red(7, 104)]
    vb.append(It([], ev="MAXD"))
    LAT = 130
    nop = lambda **kw: It([], **kw)
    for u in range(8):
        items = hb(u)
        if u == 6: items[0] = It(items[0], after=[("VR9", LAT)])
        if u == 7: items[0] = It(items[0], after=[("VR10", LAT)])
        if u in (2, 4, 6):
            nq = cfg.nquiet
            bar = It([waitlds("PW"), barrier()] + (stamp() if cfg.cs == 2 else []), ev="R%d" % (u - 1), quiet=False)
            extra = hsum(0, 239) + hsum(1, 238) if u == 2 else []
            if u == 6: items = [bar] + items if False else items[:nq] + [bar] + items[nq:]
            else: items = items[:nq] + [bar] + extra + items[nq:]
        vb += items
        if u in (0, 1): vb += [40, [valu("v_mov_b32", V(239 - u), V(vSUMD))]]
        else: vb += [40] + hsum(u)
        vb.append(It(stamp() if cfg.cs == 2 and u == 7 else [], ev="B%d" % u, quiet=True if u in (1, 3, 5) else None))
    fs = []
    for u in range(0, 6, 2):
        fs += [It([dsr("ds_read_b128", V(104, 4), x_rd, XSH[u])], after=[("R5", 0)]), [dsr("ds_read_b128", V(236, 4), x_rd, XSH[u + 1])], LAT]
        for uu, d in ((u, 104), (u + 1, 236)):
            fs += [[valu("v_add_f32", V(d), V(d), V(d + 1))], [valu("v_add_f32", V(d + 2), V(d + 2), V(d + 3))],
                   [valu("v_add_f32", V(d), V(d), V(d + 2))], [valu("v_rcp_f32", V(RLH[uu]), V(d))]]
    fs.append(It([], after=[("B7", 0)], ev="RLD"))
    ts.add(fs, 6)
    ts.add(vb, 5)
    qx = [q_dma_const(t) for t in (8, 9, 10)]
    rd = []; dm = []
    def add_dma(lst, after):
        for x, it in enumerate(lst):
            dm.append(It(it, after=after if x == 0 else [])); dm.append(cfg.dgap)
    add_dma(v_issue(["Q0", "Q1", "Q2"]), [])
    need = {8: "B4", 10: "B5", 14: "B6", 16: "B7", 20: "RLD", 22: "F10"}
    for i in range(24):
        af = [("T0", cfg.va_step * (i + cfg.va_off))]
        if i in need: af.append((need[i], 0))
        if i == 0: af.append(("MAXD", 0))
        rd.append(It(v_read(i), after=af, ev="VR%d" % i))
        post = v_issue([v_where[i]])
        if v_next[0] >= 24 and qx and i >= 18: post += qx.pop(0)
        if post:
            post[0] = [waitlds("VR%d" % i)] + post[0]
            add_dma(post, [("VR%d" % i, LAT)])
    assert not qx
    ts.add(rd, 2); ts.add(dm, 3)
    Rt = {0: cfg.tR1, 1: cfg.tR1, 2: cfg.tR3, 3: cfg.tR3, 4: cfg.tR5, 5: cfg.tR5}
    Vt = {s: cfg.va_step * (2 * s + 1 + cfg.va_off) for s in range(10)}
    Vt[4] = max(Vt[4], cfg.tR3 + 500); Vt[5] = max(Vt[5], cfg.tR5 - 100); Vt[6] = max(Vt[6], Vt[5] + 1)
    Vt[7] = max(Vt[7], cfg.tR5 + 800); Vt[8] = max(Vt[8], cfg.tR5 + 1600); Vt[9] = max(Vt[9], Vt[8] + 1)
    groups = sorted([(u, s) for u in range(6) for s in range(10)], key=lambda g: (max(Rt[g[0]], Vt[g[1]]), g[1], g[0]))
    groups += [(u, 10) for u in range(6)]
    groups += [(u, 11) for u in (5, 0, 1, 4, 3, 2)]
    pub = {0: "R1", 1: "R1", 2: "R3", 3: "R3", 4: "R5", 5: "R5"}
    mf = []; pr = []
    n10 = groups.index((0, 10))
    for g, (u, s) in enumerate(groups):
        if g < n10: fr = 240 + (g % 4) * 4; prev = g - 4
        else: fr = 96 + ((g - n10) % 3) * 4; prev = g - 3 if g - n10 >= 3 else -1
        af = [(pub[u], 0)]
        if prev >= 0: af.append(("G%d" % prev, 4))
        if g == 0: af.append(("MAXD", 0))
        if g >= n10: af.append(("RLD", 0))
        pr.append(It([hp_read(u, s, fr)], after=af, ev="PR%d" % g))
        for dt in range(4):
            d = V(OH[u] + dt * 4, 4)
            af = [("PR%d" % g, LAT), ("VR%d" % (2 * s + 1), LAT)] if dt == 0 else []
            mf.append(It([mfma(d, Vfrag(s, dt), V(fr, 4), d if s else 0)], after=af, ev="G%d" % g if dt == 3 else None))
        if g == n10 - 1: mf.append(It(stamp() if cfg.cs == 2 else [], ev="F10"))
    ts.add(mf, -1); ts.add(pr, 1)
    ng = len(groups)
    e5 = epi(OH[5], 5, rlreg=RLH[5], soff=s_e[5]); e0 = epi(OH[0], 0, rlreg=RLH[0], soff=s_e[0])
    e5[0] = It(e5[0], after=[("G%d" % (ng - 6), 40)]); e0[0] = It(e0[0], after=[("G%d" % (ng - 5), 40)])
    ts.add(e5 + e0, 4)
    o += ts.run()
    sys.stderr.write("V phase estimate: %d cycles; events %s\n" % (ts.t, " ".join("%s=%d" % (k, v) for k, v in ev.items() if k[0] in "BRF" or k in ("VR23", "MAXD"))))
    sys.stderr.write("V placement: %s\n" % " ".join("%d:%s" % (i, v_where[i]) for i in range(24)))
    o += [waitlds("PW"), waitvm("Q8"), barrier()] + q_reads(7, 0)
    return o

def build():
    first, rest = setup()
    periods = [first + phase_K(rest) + stamp() + (cstamp(14) if cfg.cs >= 1 else [])]
    sp = {"b1_start": 12,
          "streams": [(epi(OH[1], 1, rlreg=RLH[1], soff=s_e[1]), 0, 9), (epi(OH[4], 4, rlreg=RLH[4], soff=s_e[4]), 4, 11),
                      (epi(OH[3], 3, rlreg=RLH[3], soff=s_e[3]), 14, 44), (epi(OH[2], 2, rlreg=RLH[2], soff=s_e[2]), 40, 80),
                      ([[valu("v_mov_b32", V(vONES + i), "0x3f803f80")] for i in range(4)], 50, 90)],
          "pins": [(2 + 6 * x, it, False) for x, it in enumerate(sum([q_dma_const(t) for t in range(11, 16)], []))] + [(78, [waitvm("Q9"), barrier()], False),
                   (90, [salu("s_mov_b32", S(s_qg), 16 * 8192), salu("s_mov_b32", S(s_og), 6 * 8192), salu("s_mov_b32", S(s_qoff), 0)], True)]}
    periods.append(phase_V() + stamp() + (cstamp(15) if cfg.cs >= 1 else []) + interval(7, special=sp)[0] + stamp() + (cstamp(14) if cfg.cs == 0 else []))
    profs = {}
    for k in range(8, 22, 2):
        a, pa = interval(k, loop=True); b, pb = interval(k + 1, loop=True)
        periods.append(a + b); profs[k] = pa + pb
    t = stamp() + (cstamp(15) if cfg.cs == 0 else [])
    for k in (22, 23, 24): t += interval(k)[0]
    for it in epi(vO, 23): t += it
    periods.append(t)
    stream = []
    nl = len(periods)
    for p, lst in enumerate(periods):
        for k, ins in enumerate(lst):
            ins.period = p
            if 2 <= p <= nl - 2: ins.site = k
            stream.append(ins)
    fin = finalize(stream)
    txt = {}
    for ins in fin: txt.setdefault(ins.period, []).append(ins.text)
    for p in range(3, nl - 1): assert txt[p] == txt[2], "period %d differs" % p
    body = txt[0] + txt[1] + [".p2align 3", "L_loop:"] + txt[2] + txt[nl - 1]
    tail = []
    if cfg.stamp:
        tail += ["s_waitcnt vmcnt(0)"] + [x.text for x in stamp()]
        n = stamp_n[0]
        tail += ["s_waitcnt lgkmcnt(0)", "s_lshl_b32 s3, s2, 7"]
        for j in range(32):
            src = s_st + j if (j < 2 * n or j >= 28) else s_st + 2 * (n - 1) + (j & 1)
            tail.append("v_mov_b32 v%d, s%d" % (j, src))
        tail += ["v_mov_b32 v32, 0", "s_cmp_lg_u32 s%d, 0" % s_wave, "s_cbranch_scc1 L_done", "s_mov_b64 exec, 1"]
        for j in range(8): tail.append("buffer_store_dwordx4 v[%d:%d], v32, s[%d:%d], s3 offen offset:%d" % (4 * j, 4 * j + 3, sW, sW + 3, 16 * j))
    body += tail + ["L_done:", "s_endpgm"]
    sys.stderr.write("loop instrs: %d; filler cost profile:\n%s\n total %d\n" % (len(txt[2]), " ".join(map(str, profs[8])), sum(profs[8])))
    nw = [t for t in txt[2] if t.startswith("s_waitcnt")]; nn = [t for t in txt[2] if t.startswith("s_nop")]
    sys.stderr.write("loop waits %s nops %s\n" % (nw, nn))
    return wrap("\n".join("  " + t for t in body), 256, 256, LDS_TOTAL, 512, 256)

open(sys.argv[1], "w").write(build())
```

```python
import sys, struct
from genlib import *
from asmlib import *

class Cfg:
    ld_flags = ""; q_flags = ""; st_flags = ""
    stamp = False
    vring = 5
    e_end = 40
    b_start = 5; b_end = 90
    gap = 8
    dma_slot = 1
    wdelay = 4
    xcost = 8
    stcost = 8
    pubdelay = 2
    verbose = False
cfg = Cfg()
for arg in sys.argv[2:]:
    k, v = arg.split("=")
    cur = getattr(cfg, k)
    setattr(cfg, k, type(cur)(v) if not isinstance(cur, bool) else v in ("1", "True"))

HEAD_BYTES = 196608
NU = 24
XM = [0, 256]; XS = [512, 768]
PBASE = 1024; PBUF = 12288
QBASE = PBASE + 2 * PBUF; QSLOT = 8448
XBASE = QBASE + 8 * QSLOT
XW = ((163840 - XBASE) // 4) // 1024 * 1024
LDS_TOTAL = XBASE + 4 * XW
assert LDS_TOTAL <= 163840
KRING = XW // 4096
vS = 0; vO = 48; vF = 64; vONES = 96; vSUMD = 100; vT = 104
q_rd, p_rd, p_wr, x_rd, x_wr, dma_voff, o_voff = 108, 109, 110, 111, 112, 113, 114
mx, mc, lnext, rl = 115, 116, 117, 118
v_voff, v_rd0, v_rd1 = 119, 120, 121
k_voff0, k_voff1, k_rd0, k_rd1 = 122, 123, 124, 125
tmp = 48
def Kfrag(kt, ks): return A(kt * 32 + ks * 4, 4)
def Vfrag(s, dt): return A(192 + s * 16 + dt * 4, 4) if s < 4 else V(128 + (s - 4) * 16 + dt * 4, 4)
def Sb(u): return vS + (u % 2) * 24
def Freg(blk, i): return vF + (blk % 2) * 16 + i * 4
sQ, sK, sV, sO, sW = 8, 12, 16, 20, 40
s_c, s_wave, s_qg, s_og, s_qoff, s_wq, s_dm, s_t0, s_t1, s_t2 = 24, 25, 26, 27, 28, 29, 30, 31, 32, 33
s_xw, s_big, s_qd = 34, 36, 37
s_st = 48
CONST = struct.unpack("<I", struct.pack("<f", 1.4426950408889634 / 16.0))[0]

stamp_n = [0]
def stamp():
    if not cfg.stamp: return []
    i = stamp_n[0]; stamp_n[0] += 1
    assert i < 6
    return [raw("s_memrealtime s[%d:%d]" % (s_st + 2 * i, s_st + 2 * i + 1))]
def cstamp(i):
    if not cfg.stamp: return []
    return [raw("s_memtime s[%d:%d]" % (s_st + 2 * i, s_st + 2 * i + 1))]

def setup():
    o = []; a = o.append
    a(raw("s_cmp_ge_u32 s2, 256")); a(raw("s_cbranch_scc1 L_done"))
    o += stamp()
    a(raw("s_load_dwordx4 s[4:7], s[0:1], 0"))
    a(raw("s_load_dwordx4 s[44:47], s[0:1], 16"))
    if cfg.stamp: a(raw("s_load_dwordx2 s[38:39], s[0:1], 40"))
    a(salu("s_and_b32", S(3), S(2), 7)); a(salu("s_lshr_b32", S(s_t0), S(2), 3))
    a(salu("s_lshl_b32", S(3), S(3), 5)); a(salu("s_add_u32", S(3), S(3), S(s_t0)))
    a(salu("s_lshr_b32", S(s_t0), S(3), 1))
    a(salu("s_mul_i32", S(s_t1), S(3), HEAD_BYTES)); a(salu("s_mul_i32", S(s_t2), S(s_t0), HEAD_BYTES))
    L, W, Q, G = tmp, tmp + 1, tmp + 2, tmp + 3
    t0, t1, t2, t3 = tmp + 4, tmp + 5, tmp + 6, tmp + 7
    a(valu("v_lshrrev_b32", V(W), 6, V(0))); a(valu("v_and_b32", V(L), 63, V(0)))
    a(valu("v_and_b32", V(Q), 15, V(0))); a(valu("v_bfe_u32", V(G), V(0), 4, 2))
    a(readfirstlane(s_wave, W))
    a(valu("v_and_b32", V(t0), 31, V(L))); a(valu("v_lshrrev_b32", V(t1), 5, V(L)))
    a(valu("v_xor_b32", V(t0), V(t0), V(t1))); a(valu("v_lshlrev_b32", V(t0), 4, V(t0)))
    a(valu("v_lshl_add_u32", V(t0), V(t1), 9, V(t0))); a(valu("v_lshl_add_u32", V(dma_voff), V(W), 11, V(t0)))
    a(valu("v_lshrrev_b32", V(t0), 3, V(L))); a(valu("v_and_b32", V(t1), 7, V(L)))
    a(valu("v_xor_b32", V(t2), V(t1), V(G))); a(valu("v_lshlrev_b32", V(t2), 4, V(t2)))
    a(valu("v_lshl_add_u32", V(t2), V(t0), 9, V(t2)))
    a(valu("v_mul_u32_u24", V(k_voff0), 49152, V(W))); a(valu("v_add_u32", V(k_voff0), V(k_voff0), V(t2)))
    a(valu("v_xor_b32", V(k_voff1), 64, V(k_voff0)))
    a(raw("s_waitcnt lgkmcnt(0)"))
    def srd(d, p, off):
        a(salu("s_add_u32", S(d), S(p), S(off))); a(salu("s_addc_u32", S(d + 1), S(p + 1), 0))
        a(salu("s_mov_b32", S(d + 2), HEAD_BYTES)); a(salu("s_mov_b32", S(d + 3), "0x20000"))
    srd(sQ, 4, s_t1); srd(sK, 6, s_t2)
    a(salu("s_mul_i32", S(s_wq), S(s_wave), 2 * 1056)); a(salu("s_add_u32", S(s_wq), S(s_wq), QBASE))
    a(salu("s_mul_i32", S(s_xw), S(s_wave), XW)); a(salu("s_add_u32", S(s_xw), S(s_xw), XBASE))
    first = o
    o = []; a = o.append
    srd(sV, 44, s_t2); srd(sO, 46, s_t1)
    if cfg.stamp:
        a(salu("s_mov_b32", S(sW), S(38))); a(salu("s_mov_b32", S(sW + 1), S(39)))
        a(salu("s_mov_b32", S(sW + 2), 268435456)); a(salu("s_mov_b32", S(sW + 3), "0x20000"))
    a(salu("s_mov_b32", S(s_c), "0x%08x" % CONST)); a(salu("s_mov_b32", S(s_big), HEAD_BYTES))
    a(valu("v_and_b32", V(t2), 1, V(G))); a(valu("v_lshlrev_b32", V(t2), 2, V(t2))); a(valu("v_xor_b32", V(t2), V(t1), V(t2)))
    a(valu("v_lshlrev_b32", V(t2), 4, V(t2))); a(valu("v_lshl_add_u32", V(t2), V(t0), 9, V(t2)))
    a(valu("v_lshl_add_u32", V(v_voff), V(W), 7, V(t2)))
    a(valu("v_lshrrev_b32", V(t0), 1, V(Q))); a(valu("v_mul_u32_u24", V(t0), 1056, V(t0)))
    a(valu("v_and_b32", V(t1), 1, V(Q))); a(valu("v_lshl_add_u32", V(t0), V(t1), 9, V(t0)))
    a(valu("v_xor_b32", V(t1), V(t1), V(G))); a(valu("v_lshl_add_u32", V(t0), V(t1), 4, V(t0)))
    a(valu("v_add_u32", V(q_rd), QBASE, V(t0)))
    a(valu("v_lshlrev_b32", V(t0), 4, V(L))); a(valu("v_add_u32", V(p_rd), PBASE, V(t0)))
    a(valu("v_mul_u32_u24", V(t1), 3072, V(W))); a(valu("v_add_u32", V(p_wr), V(p_rd), V(t1)))
    a(valu("v_lshlrev_b32", V(x_rd), 4, V(Q))); a(valu("v_lshl_add_u32", V(x_wr), V(W), 2, V(x_rd)))
    a(valu("v_lshlrev_b32", V(t0), 9, V(Q))); a(valu("v_lshl_add_u32", V(t0), V(G), 4, V(t0)))
    a(valu("v_lshl_add_u32", V(o_voff), V(W), 7, V(t0)))
    a(valu("v_lshrrev_b32", V(t0), 1, V(Q))); a(valu("v_xor_b32", V(t0), V(t0), V(G)))
    a(valu("v_lshlrev_b32", V(t0), 4, V(t0))); a(valu("v_lshl_add_u32", V(t0), V(Q), 7, V(t0)))
    a(valu("v_xor_b32", V(t1), 64, V(t0)))
    a(valu("v_add_u32", V(k_rd0), S(s_xw), V(t0))); a(valu("v_add_u32", V(k_rd1), S(s_xw), V(t1)))
    a(valu("v_lshrrev_b32", V(t0), 2, V(Q))); a(valu("v_lshl_add_u32", V(t0), V(G), 2, V(t0)))
    a(valu("v_and_b32", V(t1), 3, V(Q))); a(valu("v_bfe_u32", V(t2), V(t0), 1, 1)); a(valu("v_lshl_add_u32", V(t1), V(t2), 2, V(t1)))
    a(valu("v_lshlrev_b32", V(t1), 4, V(t1))); a(valu("v_lshl_add_u32", V(t1), V(t0), 7, V(t1)))
    a(valu("v_xor_b32", V(t2), 64, V(t1)))
    a(valu("v_add_u32", V(v_rd0), S(s_xw), V(t1))); a(valu("v_add_u32", V(v_rd1), S(s_xw), V(t2)))
    for i in range(4): a(valu("v_mov_b32", V(vONES + i), "0x3f803f80"))
    return first, o

def q_dma_const(u):
    o = []
    for jj in range(2):
        o.append([salu("s_add_u32", "m0", S(s_wq), (u % 8) * QSLOT + jj * 32), salu("s_mov_b32", S(s_t0), u * 8192),
                  dma(dma_voff, sQ, S(s_t0), jj * 1024, cfg.q_flags, tag="Q%d" % u)])
    return o
def k_dma(u):
    j, kg = divmod(u, 3)
    off = (u % KRING) * 4096
    o = []
    for pp in range(4):
        o += [salu("s_add_u32", "m0", S(s_xw), off + pp * 1024), salu("s_mov_b32", S(s_t0), kg * 16384 + pp * 4096 + j * 128),
              dma(k_voff1 if pp & 1 else k_voff0, sK, S(s_t0), 0, cfg.ld_flags, tag="K%d" % u)]
    return o
def k_read(u):
    j, kg = divmod(u, 3)
    off = (u % KRING) * 4096
    o = [waitvm("K%d" % u)]
    for u2 in range(2):
        for ks in range(2):
            o.append(dsr("ds_read_b128", Kfrag(2 * kg + u2, 2 * j + ks), k_rd1 if ks else k_rd0, off + u2 * 2048, tag="KR%d" % u))
    return o
VR = XW // 2048
def v_dma(i):
    o = []
    for pp in range(2):
        o += [salu("s_add_u32", "m0", S(s_xw), (i % VR) * 2048 + pp * 1024), salu("s_mov_b32", S(s_t0), i * 8192 + pp * 4096),
              dma(v_voff, sV, S(s_t0), 0, cfg.ld_flags, tag="V%d" % i)]
    return o
def v_read(i):
    s, jj = divmod(i, 2)
    o = [waitvm("V%d" % i)]
    for dt in range(4):
        k, b, _ = Vfrag(s, dt)
        o.append(dsr("ds_read_b64_tr_b16", (k, b + 2 * jj, 2), v_rd1 if dt >= 2 else v_rd0, (i % VR) * 2048 + 8 * (dt % 2), tag="VR%d" % i))
    return o
def dummy_st():
    return [vstore(V(vT, 4), o_voff, sO, S(s_big), 0, "", tag="D")]

def q_reads(k, b):
    u = k + 1
    return [dsr("ds_read_b128", V(Freg(5 * k + b, i), 4), q_rd, (u % 2) * QSLOT + (4 * b + i) * 64) for i in range(4)]
def p_reads(k, c):
    u = k - 1
    return [dsr("ds_read_b128", V(Freg(5 * k + 2 + c, i), 4), p_rd, (u % 2) * PBUF + (4 * c + i) * 1024) for i in range(4)]
def mfma_slot(k, slot, obase=vO):
    if slot < 48:
        b, r = divmod(slot, 24); kt, i = divmod(r, 4); ks = 4 * b + i
        d = V(Sb(k + 1) + kt * 4, 4)
        need = R("v", Freg(5 * k + b, 0), 16) if r == 0 else ()
        return mfma(d, Kfrag(kt, ks), V(Freg(5 * k + b, i), 4), d if ks else 0, need=need)
    c, r = divmod(slot - 48, 16); dt, i = divmod(r, 4); s = 4 * c + i
    d = V(obase + dt * 4, 4)
    need = R("v", Freg(5 * k + 2 + c, 0), 16) if r == 0 else ()
    return mfma(d, Vfrag(s, dt), V(Freg(5 * k + 2 + c, i), 4), d if s else 0, need=need)

def b_chunk(u, i, sb=None, poff=None):
    b = (Sb(u) if sb is None else sb) + 8 * i
    fma = lambda r: valu("v_fma_f32", V(b + r), V(b + r), S(s_c), NV(mc))
    ex = lambda r: valu("v_exp_f32", V(b + r), V(b + r))
    cvt = lambda j: valu("v_cvt_pk_bf16_f32", V(b + j), V(b + 2 * j), V(b + 2 * j + 1))
    po = (u % 2) * PBUF if poff is None else poff
    seq = [fma(0), fma(1), ex(0), fma(2), fma(3), ex(1), ex(2), fma(4), cvt(0), ex(3), fma(5), fma(6), ex(4), fma(7), cvt(1), ex(5), ex(6), ex(7), cvt(2), cvt(3),
           dsw("ds_write_b128", p_wr, V(b, 4), po + i * 1024, tag="PW"),
           mfma(V(vSUMD, 4), V(vONES, 4), V(b, 4), V(vSUMD, 4) if i else 0)]
    return [[x] for x in seq]
def max_ops(u, sb=None, dst=mx):
    b = Sb(u) if sb is None else sb
    o = [valu("v_max3_f32", V(dst), V(b), V(b + 1), V(b + 2))]
    i = 3
    while i < 24:
        if i + 1 < 24: o.append(valu("v_max3_f32", V(dst), V(dst), V(b + i), V(b + i + 1))); i += 2
        else: o.append(valu("v_max_f32", V(dst), V(dst), V(b + i))); i += 1
    return [[x] for x in o]
def max_publish(u, src=mx, off=None):
    off = XM[u % 2] if off is None else off
    return [[dsw("ds_write_b32", x_wr, V(src), off, tag="PW", cost=cfg.xcost)], [dsw("ds_max_f32", x_wr, V(src), off, tag="PW", cost=cfg.xcost)]]
def max_fetch():
    return [[valu("v_max3_f32", V(mc), V(vT), V(vT + 1), V(vT + 2))], [valu("v_max_f32", V(mc), V(mc), V(vT + 3))],
            [valu("v_mul_f32", V(mc), S(s_c), V(mc))]]
def sum_publish(u): return [[dsw("ds_write_b32", x_wr, V(vSUMD), XS[u % 2], tag="PW", cost=cfg.xcost)]]
def sum_fetch():
    return [[valu("v_add_f32", V(vSUMD), V(vSUMD), V(vSUMD + 1))], [valu("v_add_f32", V(vSUMD + 2), V(vSUMD + 2), V(vSUMD + 3))],
            [valu("v_add_f32", V(lnext), V(vSUMD), V(vSUMD + 2))]]
def epi(obase, u, rlreg=rl, sched=False):
    o = []
    for h in range(2):
        b = obase + h * 8
        mul = lambda r: valu("v_mul_f32", V(b + r), V(rlreg), V(b + r))
        cvt = lambda j: valu("v_cvt_pk_bf16_f32", V(b + j), V(b + 2 * j), V(b + 2 * j + 1))
        o += [mul(0), mul(1), mul(2), mul(3), cvt(0), mul(4), mul(5), cvt(1), mul(6), mul(7), cvt(2), cvt(3),
              vstore(V(b, 4), o_voff, sO, S(s_og), h * 64, cfg.st_flags, tag="ST", cost=cfg.stcost)]
    o = [[x] for x in o]
    if sched:
        w = cfg.wdelay
        o = o[:12] + o[13:13 + w] + o[12:13] + o[13 + w:25] + [cfg.pubdelay] + o[25:]
    return o

class Sched:
    def __init__(self, n0, n1):
        self.n0 = n0; self.n1 = n1
        self.pre = {s: [] for s in range(n0, n1)}; self.post = {s: [] for s in range(n0, n1)}
        self.streams = []
    def pin(self, slot, item, post=False):
        slot = max(self.n0, min(self.n1 - 1, slot))
        (self.post if post else self.pre)[slot].append(item)
    def stream(self, items, start, end, earliest=None):
        self.streams.append({"items": list(items), "start": start, "end": min(end, self.n1 - 1), "i": 0, "earliest": earliest or {}})
    def emit(self, mf):
        out = []; prof = []
        cost = lambda it: 0 if isinstance(it, int) else sum(i.cost for i in it)
        for s in range(self.n0, self.n1):
            m = mf(s)
            if m is not None: out.append(m)
            budget = cfg.gap; used = 0
            for it in self.pre[s]:
                out += it; budget -= cost(it); used += cost(it)
            budget -= sum(cost(it) for it in self.post[s])
            while True:
                cands = []
                for st in self.streams:
                    while st["i"] < len(st["items"]) and isinstance(st["items"][st["i"]], int):
                        st["start"] = max(st["start"], s + st["items"][st["i"]]); st["i"] += 1
                    if st["i"] >= len(st["items"]) or s < st["start"] or s < st["earliest"].get(st["i"], -1): continue
                    rem = sum(cost(x) for x in st["items"][st["i"]:])
                    slack = (st["end"] - s) * cfg.gap - rem
                    cands.append((slack, st))
                if not cands: break
                cands.sort(key=lambda x: x[0])
                pick = None
                for slack, st in cands:
                    c = cost(st["items"][st["i"]])
                    if c <= budget or (budget >= cfg.gap and c > budget) or st["items"][st["i"]][0].kind == "mfma" and budget <= 0:
                        pick = st; break
                if pick is None:
                    slack, st = cands[0]
                    if slack < 0: pick = st
                if pick is None: break
                it = pick["items"][pick["i"]]; pick["i"] += 1
                out += it; used += cost(it)
                if it[0].kind == "mfma": budget = cfg.gap
                else: budget -= cost(it)
            for it in self.post[s]:
                out += it; used += cost(it)
            prof.append(used)
        for st in self.streams: assert st["i"] == len(st["items"]), "stream not drained"
        return out, prof

def q_advance():
    return [[salu("s_add_u32", S(s_t2), S(s_qoff), 2 * QSLOT)],
            [salu("s_cmp_eq_u32", None, S(s_t2), 8 * QSLOT), salu("s_cselect_b32", S(s_t2), 0, S(s_t2))],
            [salu("s_sub_u32", S(s_qd), S(s_t2), S(s_qoff))], [salu("s_mov_b32", S(s_qoff), S(s_t2))],
            [valu("v_add_u32", V(q_rd), S(s_qd), V(q_rd))]]

def interval(k, loop=False, vserv=None, extra_pins=None):
    hasA = k + 1 < NU; hasC = k >= 1; hasB = k < NU; hasE = k >= 2
    n0 = 0 if hasA else 48
    n1 = 96 if hasC else 48
    sc = Sched(n0, n1)
    obase = vO if k != NU - 1 else vS
    ebase = vO if k != NU else vS
    sc_ = lambda x: x
    head = []
    if hasB: head.append(dsr("ds_read_b128", V(vT, 4), x_rd, XM[k % 2]))
    if k >= 1: head.append(dsr("ds_read_b128", V(vSUMD, 4), x_rd, XS[(k - 1) % 2]))
    sc.pin(n0, head)
    if hasA: sc.stream([[x] for x in q_reads(k, 1)], 1, 12)
    if hasC:
        if hasA: sc.stream([[x] for x in p_reads(k, 0)], 25, 38)
        sc.stream([[x] for x in p_reads(k, 1)], 49, 55)
        sc.stream([[x] for x in p_reads(k, 2)], 65, 71)
    if k + 2 < NU or loop:
        if hasC: sc.stream([[x] for x in q_reads(k + 1, 0)], 81, 87)
    elif k + 1 <= NU:
        pass
    b0 = n0 + cfg.b_start
    bend = min(cfg.b_end, n1 - 5)
    sf = sum_fetch() if k >= 1 else []
    if hasB:
        c0, c1, c2 = b_chunk(k, 0), b_chunk(k, 1), b_chunk(k, 2)
        w = cfg.wdelay
        items = max_fetch() + sf + c0[:-2] + c1[:w] + c0[-2:-1] + c1[w:w + 2] + c0[-1:] + c1[w + 2:-2] + c2[:w] + c1[-2:-1] + c2[w:w + 2] + c1[-1:] + c2[w + 2:-2]
        items += [cfg.pubdelay] + c2[-1:] + c2[-2:-1] + [4] + sum_publish(k)
        sc.stream(items, b0, bend)
    else:
        sc.stream(sf, b0, b0 + 4)
    if hasE:
        e_end = cfg.e_end if hasA else 80
        sc.stream(epi(ebase, k - 2, sched=True) + [[salu("s_add_u32", S(s_og), S(s_og), 8192)]], n0 + 3, e_end)
        sc.stream([[valu("v_rcp_f32", V(rl), V(lnext))]], e_end + 1, e_end + 6)
    elif k == 1:
        sc.stream([[valu("v_rcp_f32", V(rl), V(lnext))]], 41, 46)
    if hasA:
        mo = max_ops(k + 1)
        ear = {j: 27 + 4 * min(5, (2 + 2 * j) // 4) + 4 for j in range(len(mo))}
        if n1 == 48:
            sc.tail = [[x] for x in q_reads(k + 1, 0)] + mo + max_publish(k + 1)
        else:
            mp = max_publish(k + 1)
            sc.stream(mo + [cfg.pubdelay] + mp[:1] + [1] + mp[1:], 30, bend, earliest=ear)
    if loop:
        if k % 2 == 0: sc.pin(cfg.dma_slot, [salu("s_add_u32", S(s_dm), S(s_wq), S(s_qoff))])
        for jj in range(2):
            off = (k % 2) * QSLOT + jj * 32
            sc.pin(cfg.dma_slot + 1 + 2 * jj, [salu("s_add_u32", "m0", S(s_dm), off) if off else salu("s_mov_b32", "m0", S(s_dm))], post=True)
            sc.pin(cfg.dma_slot + 2 + 2 * jj, [dma(dma_voff, sQ, S(s_qg), jj * 1024, cfg.q_flags, tag="Q%d" % (k + 8), cost=8)])
        sc.stream([[salu("s_add_u32", S(s_qg), S(s_qg), 8192)]], cfg.dma_slot + 6, 60)
    if k % 2 == 0 and (k + 2 < NU or loop): sc.stream(q_advance(), 14 if hasC else 14, 70 if hasC else 24)
    if extra_pins:
        for s, it, post in extra_pins: sc.pin(s, it, post)
    out, prof = sc.emit(lambda s: mfma_slot(k, s, obase))
    for it in getattr(sc, "tail", []): out += it
    if k < NU:
        out += [waitlds("PW")]
        if k + 3 < NU or loop: out.append(waitvm("Q%d" % (k + 3)))
        if loop and k % 2 == 1:
            out += [salu("s_cmp_lt_u32", None, S(s_og), 20 * 8192), barrier(), raw("s_cbranch_scc1 L_loop", "branch")]
        else:
            out.append(barrier())
        if k + 2 >= NU and not loop: out += p_reads(k + 1, 0)
    return out, prof

def prologue_simple(rest):
    o = []
    for it in q_dma_const(0): o += it
    for u in range(KRING): o += k_dma(u)
    o += rest
    o.append(salu("s_mov_b32", S(s_qoff), 0))
    nv = [0]
    for u in range(12):
        o += k_read(u)
        if u == 0: o += [waitvm("Q0"), barrier()]
        if u >= 1:
            o.append(waitlds("KR%d" % (u - 1)))
            if u - 1 + KRING < 12: o += k_dma(u - 1 + KRING)
            else:
                if u - 1 + KRING == 12:
                    for t in (1, 2, 3):
                        for it in q_dma_const(t): o += it
                base = ((u - 1) % KRING) * 2
                o.append(("vslot", base))
        if u % 3 == 2:
            j = u // 3
            for i in range(2): o.append(dsr("ds_read_b128", V(vF + 4 * i, 4), q_rd, (2 * j + i) * 64))
            for kt in range(6):
                for i in range(2):
                    ks = 2 * j + i; d = V(Sb(0) + kt * 4, 4)
                    o.append(mfma(d, Kfrag(kt, ks), V(vF + 4 * i, 4), d if ks else 0))
    o.append(waitlds("KR11")); o.append(("vslot", (11 % KRING) * 2))
    return o

def build():
    global VR, VMAP
    first, rest = setup()
    pro = prologue_simple(rest)
    order = []
    for x in pro:
        if isinstance(x, tuple): order += [x[1], x[1] + 1]
    VR_ = len(order)
    def vslot(i): return order[i % VR_]
    global v_dma, v_read
    def v_dma(i):
        o = []
        for pp in range(2):
            o += [salu("s_add_u32", "m0", S(s_xw), vslot(i) * 2048 + pp * 1024), salu("s_mov_b32", S(s_t0), i * 8192 + pp * 4096),
                  dma(v_voff, sV, S(s_t0), 0, cfg.ld_flags, tag="V%d" % i)]
        return o
    def v_read(i):
        s, jj = divmod(i, 2)
        o = [waitvm("V%d" % i)]
        for dt in range(4):
            k, b, _ = Vfrag(s, dt)
            o.append(dsr("ds_read_b64_tr_b16", (k, b + 2 * jj, 2), v_rd1 if dt >= 2 else v_rd0, vslot(i) * 2048 + 8 * (dt % 2), tag="VR%d" % i))
        return o
    p0 = list(first); n = 0
    for x in pro:
        if isinstance(x, tuple): p0 += v_dma(n) + v_dma(n + 1); n += 2
        else: p0.append(x)
    p0 += stamp()
    for it in max_ops(0) + max_publish(0): p0 += it
    p0 += [waitlds("PW"), waitvm("Q2"), barrier()] + q_reads(0, 0)
    def service(i):
        it = v_read(i)
        post = []
        j = i - 1 + VR_
        if i >= 1 and j < 24: post = [waitlds("VR%d" % (i - 1))] + v_dma(j)
        return it, post
    pins0 = []; pins1 = []
    extra = []
    for t in range(4, 10):
        extra += q_dma_const(t)
    for i in range(0, 4):
        a, b = service(i); pins0 += [(6 + 11 * i, a, False), (6 + 11 * i, b, True)]
    for i in range(4, 8):
        a, b = service(i); pins1 += [(6 + 11 * (i - 4), a, False), (6 + 11 * (i - 4), b, True)]
    for i in range(8, 24):
        a, b = service(i)
        c = i // 8
        sl = 48 + 16 * (c - 1) + 2 * (i % 8)
        pins1 += [(sl, a, False), (sl, b, True)]
        if not b:
            for _ in range(2):
                if extra: pins1.append((sl, extra.pop(0), True))
    for it in extra: pins1.append((90, it, True))
    pins1.append((92, [salu("s_mov_b32", S(s_qg), 10 * 8192), salu("s_mov_b32", S(s_og), 0)], True))
    periods = [p0]
    i0, _ = interval(0, extra_pins=pins0); i1, _ = interval(1, extra_pins=pins1)
    periods.append(i0 + i1 + stamp() + cstamp(6))
    profs = {}
    for k in range(2, 22, 2):
        a, pa = interval(k, loop=True); b, pb = interval(k + 1, loop=True)
        periods.append(a + b); profs[k] = pa + pb
    t = stamp() + cstamp(7)
    for k in (22, 23, 24): t += interval(k)[0]
    t += stamp()
    for it in epi(vO, 23): t += it
    periods.append(t)
    stream = []
    nl = len(periods)
    for p, lst in enumerate(periods):
        for k, ins in enumerate(lst):
            ins.period = p
            if 2 <= p <= nl - 2: ins.site = k
            stream.append(ins)
    fin = finalize(stream)
    txt = {}
    for ins in fin: txt.setdefault(ins.period, []).append(ins.text)
    for p in range(3, nl - 1): assert txt[p] == txt[2], "period %d differs" % p
    body = txt[0] + txt[1] + [".p2align 3", "L_loop:"] + txt[2] + txt[nl - 1]
    tail = []
    if cfg.stamp:
        tail += ["s_waitcnt vmcnt(0)"] + [x.text for x in stamp()]
        n = stamp_n[0]
        tail += ["s_waitcnt lgkmcnt(0)", "s_lshl_b32 s3, s2, 7"]
        for j in range(16):
            src = s_st + j if (j < 2 * n or j >= 12) else s_st + 2 * (n - 1) + (j & 1)
            tail.append("v_mov_b32 v%d, s%d" % (j, src))
        tail += ["v_mov_b32 v16, 0", "s_cmp_lg_u32 s%d, 0" % s_wave, "s_cbranch_scc1 L_done", "s_mov_b64 exec, 1"]
        for j in range(4): tail.append("buffer_store_dwordx4 v[%d:%d], v16, s[%d:%d], s3 offen offset:%d" % (4 * j, 4 * j + 3, sW, sW + 3, 16 * j))
    body += tail + ["L_done:", "s_endpgm"]
    sys.stderr.write("loop instrs: %d; filler cost profile:\n%s\n total %d\n" % (len(txt[2]), " ".join(map(str, profs[2])), sum(profs[2])))
    nw = [t for t in txt[2] if t.startswith("s_waitcnt")]; nn = [t for t in txt[2] if t.startswith("s_nop")]
    sys.stderr.write("loop waits %s nops %s\n" % (nw, nn))
    return wrap("\n".join("  " + t for t in body), 256, 256, LDS_TOTAL, 512, 256)

open(sys.argv[1], "w").write(build())
```

```python
import sys, struct
from genlib import *
from asmlib import *

class Cfg:
    ld_flags = ""; q_flags = ""; st_flags = ""
    stamp = False
    vring = 5
    e_end = 40
    b_start = 5; b_end = 90
    gap = 8
    dma_slot = 1
    fl = False
    stsp = 4
    dma_sp = 2
    rdcost = 4
    w128cost = 8
    dmacost = 8
    wres = 0
    q1_start = 1
    q1_end = 12
    hsplit = 0
    wdelay = 4
    xcost = 8
    stcost = 8
    pubdelay = 2
    verbose = False
cfg = Cfg()
for arg in sys.argv[2:]:
    k, v = arg.split("=")
    cur = getattr(cfg, k)
    setattr(cfg, k, type(cur)(v) if not isinstance(cur, bool) else v in ("1", "True"))

HEAD_BYTES = 196608
NU = 24
XM = [0, 256]; XS = [512, 768]
PBASE = 1024; PBUF = 12288
QBASE = PBASE + 2 * PBUF; QSLOT = 8448
XBASE = QBASE + 8 * QSLOT
XW = ((163840 - XBASE) // 4) // 1024 * 1024
LDS_TOTAL = XBASE + 4 * XW
assert LDS_TOTAL <= 163840
KRING = XW // 4096
vS = 0; vO = 48; vF = 64; vONES = 96; vSUMD = 100; vT = 104
q_rd, p_rd, p_wr, x_rd, x_wr, dma_voff, o_voff = 108, 109, 110, 111, 112, 113, 114
mx, mc, lnext, rl = 115, 116, 117, 118
v_voff, v_rd0, v_rd1 = 119, 120, 121
k_voff0, k_voff1, k_rd0, k_rd1 = 122, 123, 124, 125
tmp = 48
def Kfrag(kt, ks): return A(kt * 32 + ks * 4, 4)
def Vfrag(s, dt): return A(192 + s * 16 + dt * 4, 4) if s < 4 else V(128 + (s - 4) * 16 + dt * 4, 4)
def Sb(u): return vS + (u % 2) * 24
def Freg(blk, i): return vF + (blk % 2) * 16 + i * 4
sQ, sK, sV, sO, sW = 8, 12, 16, 20, 40
s_c, s_wave, s_qg, s_og, s_qoff, s_wq, s_dm, s_t0, s_t1, s_t2 = 24, 25, 26, 27, 28, 29, 30, 31, 32, 33
s_xw, s_big, s_qd = 34, 36, 37
s_st = 48
CONST = struct.unpack("<I", struct.pack("<f", 1.4426950408889634 / 16.0))[0]

stamp_n = [0]
def stamp():
    if not cfg.stamp: return []
    i = stamp_n[0]; stamp_n[0] += 1
    assert i < 6
    return [raw("s_memrealtime s[%d:%d]" % (s_st + 2 * i, s_st + 2 * i + 1))]
def cstamp(i):
    if not cfg.stamp: return []
    return [raw("s_memtime s[%d:%d]" % (s_st + 2 * i, s_st + 2 * i + 1))]

def setup():
    o = []; a = o.append
    a(raw("s_cmp_ge_u32 s2, 256")); a(raw("s_cbranch_scc1 L_done"))
    o += stamp()
    a(raw("s_load_dwordx4 s[4:7], s[0:1], 0"))
    a(raw("s_load_dwordx4 s[44:47], s[0:1], 16"))
    if cfg.stamp: a(raw("s_load_dwordx2 s[38:39], s[0:1], 40"))
    a(salu("s_and_b32", S(3), S(2), 7)); a(salu("s_lshr_b32", S(s_t0), S(2), 3))
    a(salu("s_lshl_b32", S(3), S(3), 5)); a(salu("s_add_u32", S(3), S(3), S(s_t0)))
    a(salu("s_lshr_b32", S(s_t0), S(3), 1))
    a(salu("s_mul_i32", S(s_t1), S(3), HEAD_BYTES)); a(salu("s_mul_i32", S(s_t2), S(s_t0), HEAD_BYTES))
    L, W, Q, G = tmp, tmp + 1, tmp + 2, tmp + 3
    t0, t1, t2, t3 = tmp + 4, tmp + 5, tmp + 6, tmp + 7
    a(valu("v_lshrrev_b32", V(W), 6, V(0))); a(valu("v_and_b32", V(L), 63, V(0)))
    a(valu("v_and_b32", V(Q), 15, V(0))); a(valu("v_bfe_u32", V(G), V(0), 4, 2))
    a(readfirstlane(s_wave, W))
    a(valu("v_and_b32", V(t0), 31, V(L))); a(valu("v_lshrrev_b32", V(t1), 5, V(L)))
    a(valu("v_xor_b32", V(t0), V(t0), V(t1))); a(valu("v_lshlrev_b32", V(t0), 4, V(t0)))
    a(valu("v_lshl_add_u32", V(t0), V(t1), 9, V(t0))); a(valu("v_lshl_add_u32", V(dma_voff), V(W), 11, V(t0)))
    a(valu("v_lshrrev_b32", V(t0), 3, V(L))); a(valu("v_and_b32", V(t1), 7, V(L)))
    a(valu("v_xor_b32", V(t2), V(t1), V(G))); a(valu("v_lshlrev_b32", V(t2), 4, V(t2)))
    a(valu("v_lshl_add_u32", V(t2), V(t0), 9, V(t2)))
    a(valu("v_mul_u32_u24", V(k_voff0), 49152, V(W))); a(valu("v_add_u32", V(k_voff0), V(k_voff0), V(t2)))
    a(valu("v_xor_b32", V(k_voff1), 64, V(k_voff0)))
    a(raw("s_waitcnt lgkmcnt(0)"))
    def srd(d, p, off):
        a(salu("s_add_u32", S(d), S(p), S(off))); a(salu("s_addc_u32", S(d + 1), S(p + 1), 0))
        a(salu("s_mov_b32", S(d + 2), HEAD_BYTES)); a(salu("s_mov_b32", S(d + 3), "0x20000"))
    srd(sQ, 4, s_t1); srd(sK, 6, s_t2)
    a(salu("s_mul_i32", S(s_wq), S(s_wave), 2 * 1056)); a(salu("s_add_u32", S(s_wq), S(s_wq), QBASE))
    a(salu("s_mul_i32", S(s_xw), S(s_wave), XW)); a(salu("s_add_u32", S(s_xw), S(s_xw), XBASE))
    first = o
    o = []; a = o.append
    srd(sV, 44, s_t2); srd(sO, 46, s_t1)
    if cfg.stamp:
        a(salu("s_mov_b32", S(sW), S(38))); a(salu("s_mov_b32", S(sW + 1), S(39)))
        a(salu("s_mov_b32", S(sW + 2), 268435456)); a(salu("s_mov_b32", S(sW + 3), "0x20000"))
    a(salu("s_mov_b32", S(s_c), "0x%08x" % CONST)); a(salu("s_mov_b32", S(s_big), HEAD_BYTES))
    a(valu("v_and_b32", V(t2), 1, V(G))); a(valu("v_lshlrev_b32", V(t2), 2, V(t2))); a(valu("v_xor_b32", V(t2), V(t1), V(t2)))
    a(valu("v_lshlrev_b32", V(t2), 4, V(t2))); a(valu("v_lshl_add_u32", V(t2), V(t0), 9, V(t2)))
    a(valu("v_lshl_add_u32", V(v_voff), V(W), 7, V(t2)))
    a(valu("v_lshrrev_b32", V(t0), 1, V(Q))); a(valu("v_mul_u32_u24", V(t0), 1056, V(t0)))
    a(valu("v_and_b32", V(t1), 1, V(Q))); a(valu("v_lshl_add_u32", V(t0), V(t1), 9, V(t0)))
    a(valu("v_xor_b32", V(t1), V(t1), V(G))); a(valu("v_lshl_add_u32", V(t0), V(t1), 4, V(t0)))
    a(valu("v_add_u32", V(q_rd), QBASE, V(t0)))
    a(valu("v_lshlrev_b32", V(t0), 4, V(L))); a(valu("v_add_u32", V(p_rd), PBASE, V(t0)))
    a(valu("v_mul_u32_u24", V(t1), 3072, V(W))); a(valu("v_add_u32", V(p_wr), V(p_rd), V(t1)))
    a(valu("v_lshlrev_b32", V(x_rd), 4, V(Q))); a(valu("v_lshl_add_u32", V(x_wr), V(W), 2, V(x_rd)))
    a(valu("v_lshlrev_b32", V(t0), 9, V(Q))); a(valu("v_lshl_add_u32", V(t0), V(G), 4, V(t0)))
    a(valu("v_lshl_add_u32", V(o_voff), V(W), 7, V(t0)))
    if cfg.fl:
        a(valu("v_and_b32", V(t0), 7, V(Q))); a(valu("v_lshlrev_b32", V(t0), 9, V(t0))); a(valu("v_lshrrev_b32", V(t1), 3, V(Q)))
        a(valu("v_lshl_add_u32", V(t0), V(t1), 6, V(t0))); a(valu("v_lshl_add_u32", V(t0), V(G), 4, V(t0)))
        a(valu("v_lshl_add_u32", V(o_voff), V(W), 7, V(t0))); a(valu("v_xor_b32", V(t0), 64, V(o_voff))); a(valu("v_add_u32", V(127), 4096, V(t0)))
        a(salu("s_mov_b32", S(68), "0xff00ff00")); a(salu("s_mov_b32", S(69), "0xff00ff00"))
    a(valu("v_lshrrev_b32", V(t0), 1, V(Q))); a(valu("v_xor_b32", V(t0), V(t0), V(G)))
    a(valu("v_lshlrev_b32", V(t0), 4, V(t0))); a(valu("v_lshl_add_u32", V(t0), V(Q), 7, V(t0)))
    a(valu("v_xor_b32", V(t1), 64, V(t0)))
    a(valu("v_add_u32", V(k_rd0), S(s_xw), V(t0))); a(valu("v_add_u32", V(k_rd1), S(s_xw), V(t1)))
    a(valu("v_lshrrev_b32", V(t0), 2, V(Q))); a(valu("v_lshl_add_u32", V(t0), V(G), 2, V(t0)))
    a(valu("v_and_b32", V(t1), 3, V(Q))); a(valu("v_bfe_u32", V(t2), V(t0), 1, 1)); a(valu("v_lshl_add_u32", V(t1), V(t2), 2, V(t1)))
    a(valu("v_lshlrev_b32", V(t1), 4, V(t1))); a(valu("v_lshl_add_u32", V(t1), V(t0), 7, V(t1)))
    a(valu("v_xor_b32", V(t2), 64, V(t1)))
    a(valu("v_add_u32", V(v_rd0), S(s_xw), V(t1))); a(valu("v_add_u32", V(v_rd1), S(s_xw), V(t2)))
    for i in range(4): a(valu("v_mov_b32", V(vONES + i), "0x3f803f80"))
    return first, o

def q_dma_const(u):
    o = []
    for jj in range(2):
        o.append([salu("s_add_u32", "m0", S(s_wq), (u % 8) * QSLOT + jj * 32), salu("s_mov_b32", S(s_t0), u * 8192),
                  dma(dma_voff, sQ, S(s_t0), jj * 1024, cfg.q_flags, tag="Q%d" % u)])
    return o
def k_dma(u):
    j, kg = divmod(u, 3)
    off = (u % KRING) * 4096
    o = []
    for pp in range(4):
        o += [salu("s_add_u32", "m0", S(s_xw), off + pp * 1024), salu("s_mov_b32", S(s_t0), kg * 16384 + pp * 4096 + j * 128),
              dma(k_voff1 if pp & 1 else k_voff0, sK, S(s_t0), 0, cfg.ld_flags, tag="K%d" % u)]
    return o
def k_read(u):
    j, kg = divmod(u, 3)
    off = (u % KRING) * 4096
    o = [waitvm("K%d" % u)]
    for u2 in range(2):
        for ks in range(2):
            o.append(dsr("ds_read_b128", Kfrag(2 * kg + u2, 2 * j + ks), k_rd1 if ks else k_rd0, off + u2 * 2048, tag="KR%d" % u))
    return o
VR = XW // 2048
def v_dma(i):
    o = []
    for pp in range(2):
        o += [salu("s_add_u32", "m0", S(s_xw), (i % VR) * 2048 + pp * 1024), salu("s_mov_b32", S(s_t0), i * 8192 + pp * 4096),
              dma(v_voff, sV, S(s_t0), 0, cfg.ld_flags, tag="V%d" % i)]
    return o
def v_read(i):
    s, jj = divmod(i, 2)
    o = [waitvm("V%d" % i)]
    for dt in range(4):
        k, b, _ = Vfrag(s, dt)
        o.append(dsr("ds_read_b64_tr_b16", (k, b + 2 * jj, 2), v_rd1 if dt >= 2 else v_rd0, (i % VR) * 2048 + 8 * (dt % 2), tag="VR%d" % i))
    return o
def dummy_st():
    return [vstore(V(vT, 4), o_voff, sO, S(s_big), 0, "", tag="D")]

def q_reads(k, b):
    u = k + 1
    return [dsr("ds_read_b128", V(Freg(5 * k + b, i), 4), q_rd, (u % 2) * QSLOT + (4 * b + i) * 64) for i in range(4)]
def p_reads(k, c):
    u = k - 1
    return [dsr("ds_read_b128", V(Freg(5 * k + 2 + c, i), 4), p_rd, (u % 2) * PBUF + (4 * c + i) * 1024) for i in range(4)]
def rc(l):
    for x in l: x.cost = cfg.rdcost
    return [[x] for x in l]
def mfma_slot(k, slot, obase=vO):
    if slot < 48:
        b, r = divmod(slot, 24); kt, i = divmod(r, 4); ks = 4 * b + i
        d = V(Sb(k + 1) + kt * 4, 4)
        need = R("v", Freg(5 * k + b, 0), 16) if r == 0 else ()
        return mfma(d, Kfrag(kt, ks), V(Freg(5 * k + b, i), 4), d if ks else 0, need=need)
    c, r = divmod(slot - 48, 16); dt, i = divmod(r, 4); s = 4 * c + i
    d = V(obase + dt * 4, 4)
    need = R("v", Freg(5 * k + 2 + c, 0), 16) if r == 0 else ()
    return mfma(d, Vfrag(s, dt), V(Freg(5 * k + 2 + c, i), 4), d if s else 0, need=need)

def b_chunk(u, i, sb=None, poff=None):
    b = (Sb(u) if sb is None else sb) + 8 * i
    fma = lambda r: valu("v_fma_f32", V(b + r), V(b + r), S(s_c), NV(mc))
    ex = lambda r: valu("v_exp_f32", V(b + r), V(b + r))
    cvt = lambda j: valu("v_cvt_pk_bf16_f32", V(b + j), V(b + 2 * j), V(b + 2 * j + 1))
    po = (u % 2) * PBUF if poff is None else poff
    seq = [fma(0), fma(1), ex(0), fma(2), fma(3), ex(1), ex(2), fma(4), cvt(0), ex(3), fma(5), fma(6), ex(4), fma(7), cvt(1), ex(5), ex(6), ex(7), cvt(2), cvt(3),
           dsw("ds_write_b128", p_wr, V(b, 4), po + i * 1024, tag="PW", cost=cfg.w128cost),
           mfma(V(vSUMD, 4), V(vONES, 4), V(b, 4), V(vSUMD, 4) if i else 0)]
    return [[x] for x in seq]
def max_ops(u, sb=None, dst=mx):
    b = Sb(u) if sb is None else sb
    o = [valu("v_max3_f32", V(dst), V(b), V(b + 1), V(b + 2))]
    i = 3
    while i < 24:
        if i + 1 < 24: o.append(valu("v_max3_f32", V(dst), V(dst), V(b + i), V(b + i + 1))); i += 2
        else: o.append(valu("v_max_f32", V(dst), V(dst), V(b + i))); i += 1
    return [[x] for x in o]
def max_publish(u, src=mx, off=None):
    off = XM[u % 2] if off is None else off
    return [[dsw("ds_write_b32", x_wr, V(src), off, tag="PW", cost=cfg.xcost)], [dsw("ds_max_f32", x_wr, V(src), off, tag="PW", cost=cfg.xcost)]]
def max_fetch():
    return [[valu("v_max3_f32", V(mc), V(vT), V(vT + 1), V(vT + 2))], [valu("v_max_f32", V(mc), V(mc), V(vT + 3))],
            [valu("v_mul_f32", V(mc), S(s_c), V(mc))]]
def sum_publish(u): return [[dsw("ds_write_b32", x_wr, V(vSUMD), XS[u % 2], tag="PW", cost=cfg.xcost)]]
def sum_fetch():
    return [[valu("v_add_f32", V(vSUMD), V(vSUMD), V(vSUMD + 1))], [valu("v_add_f32", V(vSUMD + 2), V(vSUMD + 2), V(vSUMD + 3))],
            [valu("v_add_f32", V(lnext), V(vSUMD), V(vSUMD + 2))]]
rlrot, o_voff2 = 126, 127
s_msk = 68
def rl_ops():
    if not cfg.fl: return [[valu("v_rcp_f32", V(rl), V(lnext))]]
    return [[valu("v_rcp_f32", V(rl), V(lnext))], 1, [valu("v_mov_b32_dpp", V(rlrot), V(rl), mods="row_ror:8 row_mask:0xf bank_mask:0xf")]]
def epi(obase, u, rlreg=rl, sched=False):
    o = []
    if cfg.fl:
        for h in range(2):
            b = obase + h * 8
            if h == 0: mul = lambda r: valu("v_mul_f32", V(b + r), V(rl), V(b + r))
            else: mul = lambda r: valu("v_mul_f32_dpp", V(b + r), V(b + r), V(rlrot), mods="row_ror:8 row_mask:0xf bank_mask:0xf")
            cvt = lambda j: valu("v_cvt_pk_bf16_f32", V(b + j), V(b + 2 * j), V(b + 2 * j + 1))
            o += [mul(0), mul(1), mul(2), mul(3), cvt(0), mul(4), mul(5), cvt(1), mul(6), mul(7), cvt(2), cvt(3)]
        X = obase; Y = obase + 8
        o += [valu("v_cndmask_b32_e64", V(X + 4 + j), V(X + j), V(Y + j), S(s_msk, 2)) for j in range(4)]
        o += [valu("v_cndmask_b32_e64", V(Y + 4 + j), V(Y + j), V(X + j), S(s_msk, 2)) for j in range(4)]
        st0 = vstore(V(X + 4, 4), o_voff, sO, S(s_og), 0, cfg.st_flags, tag="ST", cost=cfg.stcost)
        st1 = vstore(V(Y + 4, 4), o_voff2, sO, S(s_og), 0, cfg.st_flags, tag="ST", cost=cfg.stcost)
        o = [[x] for x in o]
        if sched: return o + [[st0], cfg.stsp, [st1]]
        return o[:28] + [[st0]] + o[28:] + [[st1]]
    for h in range(2):
        b = obase + h * 8
        mul = lambda r: valu("v_mul_f32", V(b + r), V(rlreg), V(b + r))
        cvt = lambda j: valu("v_cvt_pk_bf16_f32", V(b + j), V(b + 2 * j), V(b + 2 * j + 1))
        o += [mul(0), mul(1), mul(2), mul(3), cvt(0), mul(4), mul(5), cvt(1), mul(6), mul(7), cvt(2), cvt(3),
              vstore(V(b, 4), o_voff, sO, S(s_og), h * 64, cfg.st_flags, tag="ST", cost=cfg.stcost)]
    o = [[x] for x in o]
    if sched:
        w = cfg.wdelay
        o = o[:12] + o[13:13 + w] + o[12:13] + o[13 + w:25] + [cfg.pubdelay] + o[25:]
    return o

class Sched:
    def __init__(self, n0, n1):
        self.n0 = n0; self.n1 = n1
        self.pre = {s: [] for s in range(n0, n1)}; self.post = {s: [] for s in range(n0, n1)}
        self.streams = []
    def pin(self, slot, item, post=False):
        slot = max(self.n0, min(self.n1 - 1, slot))
        (self.post if post else self.pre)[slot].append(item)
    def stream(self, items, start, end, earliest=None):
        self.streams.append({"items": list(items), "start": start, "end": min(end, self.n1 - 1), "i": 0, "earliest": earliest or {}})
    def emit(self, mf):
        out = []; prof = []
        cost = lambda it: 0 if isinstance(it, int) else sum(i.cost for i in it)
        for s in range(self.n0, self.n1):
            m = mf(s)
            if m is not None: out.append(m)
            budget = cfg.gap; used = 0
            for it in self.pre[s]:
                out += it; budget -= cost(it); used += cost(it)
            budget -= sum(cost(it) for it in self.post[s])
            while True:
                cands = []
                for st in self.streams:
                    while st["i"] < len(st["items"]) and isinstance(st["items"][st["i"]], int):
                        st["start"] = max(st["start"], s + st["items"][st["i"]]); st["i"] += 1
                    if st["i"] >= len(st["items"]) or s < st["start"] or s < st["earliest"].get(st["i"], -1): continue
                    rem = sum(cost(x) for x in st["items"][st["i"]:])
                    slack = (st["end"] - s) * cfg.gap - rem
                    cands.append((slack, st))
                if not cands: break
                cands.sort(key=lambda x: x[0])
                pick = None
                for slack, st in cands:
                    c = cost(st["items"][st["i"]])
                    if c <= budget or (budget >= cfg.gap and c > budget) or st["items"][st["i"]][0].kind == "mfma" and budget <= 0:
                        pick = st; break
                if pick is None:
                    slack, st = cands[0]
                    if slack < 0: pick = st
                if pick is None: break
                it = pick["items"][pick["i"]]; pick["i"] += 1
                out += it; used += cost(it)
                if it[0].kind == "mfma": budget = cfg.gap
                else: budget -= cost(it)
            for it in self.post[s]:
                out += it; used += cost(it)
            prof.append(used)
        for st in self.streams: assert st["i"] == len(st["items"]), "stream not drained"
        return out, prof

def q_advance():
    return [[salu("s_add_u32", S(s_t2), S(s_qoff), 2 * QSLOT)],
            [salu("s_cmp_eq_u32", None, S(s_t2), 8 * QSLOT), salu("s_cselect_b32", S(s_t2), 0, S(s_t2))],
            [salu("s_sub_u32", S(s_qd), S(s_t2), S(s_qoff))], [salu("s_mov_b32", S(s_qoff), S(s_t2))],
            [valu("v_add_u32", V(q_rd), S(s_qd), V(q_rd))]]

def interval(k, loop=False, vserv=None, extra_pins=None):
    hasA = k + 1 < NU; hasC = k >= 1; hasB = k < NU; hasE = k >= 2
    n0 = 0 if hasA else 48
    n1 = 96 if hasC else 48
    sc = Sched(n0, n1)
    obase = vO if k != NU - 1 else vS
    ebase = vO if k != NU else vS
    sc_ = lambda x: x
    head = []
    if hasB: head.append(dsr("ds_read_b128", V(vT, 4), x_rd, XM[k % 2]))
    if k >= 1: head.append(dsr("ds_read_b128", V(vSUMD, 4), x_rd, XS[(k - 1) % 2]))
    if cfg.hsplit and len(head) == 2: sc.pin(n0, head[:1]); sc.pin(n0 + cfg.hsplit, head[1:])
    else: sc.pin(n0, head)
    if cfg.wres:
        for x in (23, 47, 63, 79): sc.pin(x, [Ins('', 'waitlds', cost=cfg.wres, tag='none')], post=True)
    if hasA: sc.stream(rc(q_reads(k, 1)), cfg.q1_start, cfg.q1_end)
    if hasC:
        if hasA: sc.stream(rc(p_reads(k, 0)), 25, 38)
        sc.stream(rc(p_reads(k, 1)), 49, 55)
        sc.stream(rc(p_reads(k, 2)), 65, 71)
    if k + 2 < NU or loop:
        if hasC: sc.stream(rc(q_reads(k + 1, 0)), 81, 87)
    elif k + 1 <= NU:
        pass
    b0 = n0 + cfg.b_start
    bend = min(cfg.b_end, n1 - 5)
    sf = sum_fetch() if k >= 1 else []
    if hasB:
        c0, c1, c2 = b_chunk(k, 0), b_chunk(k, 1), b_chunk(k, 2)
        w = cfg.wdelay
        items = max_fetch() + sf + c0[:-2] + c1[:w] + c0[-2:-1] + c1[w:w + 2] + c0[-1:] + c1[w + 2:-2] + c2[:w] + c1[-2:-1] + c2[w:w + 2] + c1[-1:] + c2[w + 2:-2]
        items += [cfg.pubdelay] + c2[-1:] + c2[-2:-1] + [4] + sum_publish(k)
        sc.stream(items, b0, bend)
    else:
        sc.stream(sf, b0, b0 + 4)
    if hasE:
        e_end = cfg.e_end if hasA else 80
        sc.stream(epi(ebase, k - 2, sched=True) + [[salu("s_add_u32", S(s_og), S(s_og), 8192)]], n0 + 3, e_end)
        sc.stream(rl_ops(), e_end + 1, e_end + 8)
    elif k == 1:
        sc.stream(rl_ops(), 41, 48)
    if hasA:
        mo = max_ops(k + 1)
        ear = {j: 27 + 4 * min(5, (2 + 2 * j) // 4) + 4 for j in range(len(mo))}
        if n1 == 48:
            sc.tail = [[x] for x in q_reads(k + 1, 0)] + mo + max_publish(k + 1)
        else:
            mp = max_publish(k + 1)
            sc.stream(mo + [cfg.pubdelay] + mp[:1] + [1] + mp[1:], 30, bend, earliest=ear)
    if loop:
        if k % 2 == 0: sc.pin(cfg.dma_slot, [salu("s_add_u32", S(s_dm), S(s_wq), S(s_qoff))])
        for jj in range(2):
            off = (k % 2) * QSLOT + jj * 32
            sc.pin(cfg.dma_slot + 1 + cfg.dma_sp * jj, [salu("s_add_u32", "m0", S(s_dm), off) if off else salu("s_mov_b32", "m0", S(s_dm))], post=True)
            sc.pin(cfg.dma_slot + 2 + cfg.dma_sp * jj, [dma(dma_voff, sQ, S(s_qg), jj * 1024, cfg.q_flags, tag="Q%d" % (k + 8), cost=cfg.dmacost)])
        sc.stream([[salu("s_add_u32", S(s_qg), S(s_qg), 8192)]], cfg.dma_slot + cfg.dma_sp + 4, 90)
    if k % 2 == 0 and (k + 2 < NU or loop): sc.stream(q_advance(), max(14, cfg.q1_end + 2, cfg.dma_slot + 2), 76 if hasC else 24)
    if extra_pins:
        for s, it, post in extra_pins: sc.pin(s, it, post)
    out, prof = sc.emit(lambda s: mfma_slot(k, s, obase))
    for it in getattr(sc, "tail", []): out += it
    if k < NU:
        out += [waitlds("PW")]
        if k + 3 < NU or loop: out.append(waitvm("Q%d" % (k + 3)))
        if loop and k % 2 == 1:
            out += [salu("s_cmp_lt_u32", None, S(s_og), 20 * 8192), barrier(), raw("s_cbranch_scc1 L_loop", "branch")]
        else:
            out.append(barrier())
        if k + 2 >= NU and not loop: out += p_reads(k + 1, 0)
    return out, prof

def prologue_simple(rest):
    o = []
    for it in q_dma_const(0): o += it
    for u in range(KRING): o += k_dma(u)
    o += rest
    o.append(salu("s_mov_b32", S(s_qoff), 0))
    nv = [0]
    for u in range(12):
        o += k_read(u)
        if u == 0: o += [waitvm("Q0"), barrier()]
        if u >= 1:
            o.append(waitlds("KR%d" % (u - 1)))
            if u - 1 + KRING < 12: o += k_dma(u - 1 + KRING)
            else:
                if u - 1 + KRING == 12:
                    for t in (1, 2, 3):
                        for it in q_dma_const(t): o += it
                base = ((u - 1) % KRING) * 2
                o.append(("vslot", base))
        if u % 3 == 2:
            j = u // 3
            for i in range(2): o.append(dsr("ds_read_b128", V(vF + 4 * i, 4), q_rd, (2 * j + i) * 64))
            for kt in range(6):
                for i in range(2):
                    ks = 2 * j + i; d = V(Sb(0) + kt * 4, 4)
                    o.append(mfma(d, Kfrag(kt, ks), V(vF + 4 * i, 4), d if ks else 0))
    o.append(waitlds("KR11")); o.append(("vslot", (11 % KRING) * 2))
    return o

def build():
    global VR, VMAP
    first, rest = setup()
    pro = prologue_simple(rest)
    order = []
    for x in pro:
        if isinstance(x, tuple): order += [x[1], x[1] + 1]
    VR_ = len(order)
    def vslot(i): return order[i % VR_]
    global v_dma, v_read
    def v_dma(i):
        o = []
        for pp in range(2):
            o += [salu("s_add_u32", "m0", S(s_xw), vslot(i) * 2048 + pp * 1024), salu("s_mov_b32", S(s_t0), i * 8192 + pp * 4096),
                  dma(v_voff, sV, S(s_t0), 0, cfg.ld_flags, tag="V%d" % i)]
        return o
    def v_read(i):
        s, jj = divmod(i, 2)
        o = [waitvm("V%d" % i)]
        for dt in range(4):
            k, b, _ = Vfrag(s, dt)
            o.append(dsr("ds_read_b64_tr_b16", (k, b + 2 * jj, 2), v_rd1 if dt >= 2 else v_rd0, vslot(i) * 2048 + 8 * (dt % 2), tag="VR%d" % i))
        return o
    p0 = list(first); n = 0
    for x in pro:
        if isinstance(x, tuple): p0 += v_dma(n) + v_dma(n + 1); n += 2
        else: p0.append(x)
    p0 += stamp()
    for it in max_ops(0) + max_publish(0): p0 += it
    p0 += [waitlds("PW"), waitvm("Q2"), barrier()] + q_reads(0, 0)
    def service(i):
        it = v_read(i)
        post = []
        j = i - 1 + VR_
        if i >= 1 and j < 24: post = [waitlds("VR%d" % (i - 1))] + v_dma(j)
        return it, post
    pins0 = []; pins1 = []
    extra = []
    for t in range(4, 10):
        extra += q_dma_const(t)
    for i in range(0, 4):
        a, b = service(i); pins0 += [(6 + 11 * i, a, False), (6 + 11 * i, b, True)]
    for i in range(4, 8):
        a, b = service(i); pins1 += [(6 + 11 * (i - 4), a, False), (6 + 11 * (i - 4), b, True)]
    for i in range(8, 24):
        a, b = service(i)
        c = i // 8
        sl = 48 + 16 * (c - 1) + 2 * (i % 8)
        pins1 += [(sl, a, False), (sl, b, True)]
        if not b:
            for _ in range(2):
                if extra: pins1.append((sl, extra.pop(0), True))
    for it in extra: pins1.append((90, it, True))
    pins1.append((92, [salu("s_mov_b32", S(s_qg), 10 * 8192), salu("s_mov_b32", S(s_og), 0)], True))
    periods = [p0]
    i0, _ = interval(0, extra_pins=pins0); i1, _ = interval(1, extra_pins=pins1)
    periods.append(i0 + i1 + stamp() + cstamp(6))
    profs = {}
    for k in range(2, 22, 2):
        a, pa = interval(k, loop=True); b, pb = interval(k + 1, loop=True)
        periods.append(a + b); profs[k] = pa + pb
    t = stamp() + cstamp(7)
    for k in (22, 23, 24): t += interval(k)[0]
    t += stamp()
    for it in epi(vO, 23): t += it
    periods.append(t)
    stream = []
    nl = len(periods)
    for p, lst in enumerate(periods):
        for k, ins in enumerate(lst):
            ins.period = p
            if 2 <= p <= nl - 2: ins.site = k
            stream.append(ins)
    fin = finalize(stream)
    txt = {}
    for ins in fin: txt.setdefault(ins.period, []).append(ins.text)
    for p in range(3, nl - 1): assert txt[p] == txt[2], "period %d differs" % p
    body = txt[0] + txt[1] + [".p2align 3", "L_loop:"] + txt[2] + txt[nl - 1]
    tail = []
    if cfg.stamp:
        tail += ["s_waitcnt vmcnt(0)"] + [x.text for x in stamp()]
        n = stamp_n[0]
        tail += ["s_waitcnt lgkmcnt(0)", "s_lshl_b32 s3, s2, 7"]
        for j in range(16):
            src = s_st + j if (j < 2 * n or j >= 12) else s_st + 2 * (n - 1) + (j & 1)
            tail.append("v_mov_b32 v%d, s%d" % (j, src))
        tail += ["v_mov_b32 v16, 0", "s_cmp_lg_u32 s%d, 0" % s_wave, "s_cbranch_scc1 L_done", "s_mov_b64 exec, 1"]
        for j in range(4): tail.append("buffer_store_dwordx4 v[%d:%d], v16, s[%d:%d], s3 offen offset:%d" % (4 * j, 4 * j + 3, sW, sW + 3, 16 * j))
    body += tail + ["L_done:", "s_endpgm"]
    sys.stderr.write("loop instrs: %d; filler cost profile:\n%s\n total %d\n" % (len(txt[2]), " ".join(map(str, profs[2])), sum(profs[2])))
    nw = [t for t in txt[2] if t.startswith("s_waitcnt")]; nn = [t for t in txt[2] if t.startswith("s_nop")]
    sys.stderr.write("loop waits %s nops %s\n" % (nw, nn))
    return wrap("\n".join("  " + t for t in body), 256, 256, LDS_TOTAL, 512, 256)

open(sys.argv[1], "w").write(build())
```

```python
import sys, struct
from genlib import *
from asmlib import *

class Cfg:
    ld_flags = ""; q_flags = ""; st_flags = ""
    stamp = False
    e_end = 44
    b_start = 5; b_end = 90
    gap = 8
    dma_slot = 1
    vg_first = 4
    vg_pad = 2
    vg_s0 = 2
    vg_sd = 12
    nqv = 4
    qlead = 6
    vring = 6
    tailx = 34
    cpf = 0
    fl = True
    stsp = 4
    dma_sp = 2
    rdcost = 4
    w128cost = 16
    dmacost = 8
    wres = 0
    q1_start = 1
    q1_end = 12
    hsplit = 0
    wdelay = 4
    xcost = 8
    stcost = 8
    pubdelay = 2
    verbose = False
cfg = Cfg()
for arg in sys.argv[2:]:
    k, v = arg.split("=")
    cur = getattr(cfg, k)
    setattr(cfg, k, type(cur)(v) if not isinstance(cur, bool) else v in ("1", "True"))

HEAD_BYTES = 196608
NU = 24
XM = [0, 256]; XS = [512, 768]
PBUF = 12288; QSLOT = 8448
QBASE = 1024
PBASE = QBASE + 6 * QSLOT
POFF = 2 * QSLOT
XBASE = PBASE + POFF + 3 * PBUF
XW = ((163840 - XBASE) // 4) // 1024 * 1024
LDS_TOTAL = XBASE + 4 * XW
assert LDS_TOTAL <= 163840
KRING = 3
vS = 0; vO = 48; vF = 64; vONES = 96; vSUMD = 100; vT = 104
q_rd, p_rd, p_wr, x_rd, x_wr, dma_voff, o_voff = 108, 109, 110, 111, 112, 113, 114
mx, mc, lnext, rl = 115, 116, 117, 118
v_voff, v_rd0, v_rd1 = 119, 120, 121
k_voff0, k_voff1, k_rd0, k_rd1 = 122, 123, 124, 125
tmp = 48
def Kfrag(kt, ks): return A(kt * 32 + ks * 4, 4)
def Vfrag(s, dt): return A(192 + s * 16 + dt * 4, 4) if s < 4 else V(128 + (s - 4) * 16 + dt * 4, 4)
def Sb(u): return vS + (u % 2) * 24
def Freg(blk, i): return vF + (blk % 2) * 16 + i * 4
sQ, sK, sV, sO, sW = 8, 12, 16, 20, 40
s_c, s_wave, s_qg, s_og, s_qoff, s_wq, s_dm, s_t0, s_t1, s_t2 = 24, 25, 26, 27, 28, 29, 30, 31, 32, 33
s_xw, s_big, s_qd, s_dn = 34, 36, 37, 35
s_st = 48
CONST = struct.unpack("<I", struct.pack("<f", 1.4426950408889634 / 16.0))[0]

stamp_n = [0]
def stamp():
    if not cfg.stamp: return []
    i = stamp_n[0]; stamp_n[0] += 1
    assert i < 6, i
    return [raw("s_memrealtime s[%d:%d]" % (s_st + 2 * i, s_st + 2 * i + 1))]
def cstamp(i):
    if not cfg.stamp: return []
    return [raw("s_memtime s[%d:%d]" % (s_st + 2 * i, s_st + 2 * i + 1))]

def setup():
    o = []; a = o.append
    a(raw("s_cmp_ge_u32 s2, 256")); a(raw("s_cbranch_scc1 L_done"))
    o += stamp()
    a(raw("s_load_dwordx4 s[4:7], s[0:1], 0"))
    a(raw("s_load_dwordx4 s[44:47], s[0:1], 16"))
    if cfg.stamp: a(raw("s_load_dwordx2 s[38:39], s[0:1], 40"))
    a(salu("s_and_b32", S(3), S(2), 7)); a(salu("s_lshr_b32", S(s_t0), S(2), 3))
    a(salu("s_lshl_b32", S(3), S(3), 5)); a(salu("s_add_u32", S(3), S(3), S(s_t0)))
    a(salu("s_lshr_b32", S(s_t0), S(3), 1))
    a(salu("s_mul_i32", S(s_t1), S(3), HEAD_BYTES)); a(salu("s_mul_i32", S(s_t2), S(s_t0), HEAD_BYTES))
    L, W, Q, G = tmp, tmp + 1, tmp + 2, tmp + 3
    t0, t1, t2, t3 = tmp + 4, tmp + 5, tmp + 6, tmp + 7
    a(valu("v_lshrrev_b32", V(W), 6, V(0))); a(valu("v_and_b32", V(L), 63, V(0)))
    a(valu("v_and_b32", V(Q), 15, V(0))); a(valu("v_bfe_u32", V(G), V(0), 4, 2))
    a(readfirstlane(s_wave, W))
    a(valu("v_and_b32", V(t0), 31, V(L))); a(valu("v_lshrrev_b32", V(t1), 5, V(L)))
    a(valu("v_xor_b32", V(t0), V(t0), V(t1))); a(valu("v_lshlrev_b32", V(t0), 4, V(t0)))
    a(valu("v_lshl_add_u32", V(t0), V(t1), 9, V(t0))); a(valu("v_lshl_add_u32", V(dma_voff), V(W), 11, V(t0)))
    a(valu("v_lshrrev_b32", V(t0), 3, V(L))); a(valu("v_and_b32", V(t1), 7, V(L)))
    a(valu("v_xor_b32", V(t2), V(t1), V(G))); a(valu("v_lshlrev_b32", V(t2), 4, V(t2)))
    a(valu("v_lshl_add_u32", V(t2), V(t0), 9, V(t2)))
    a(valu("v_mul_u32_u24", V(k_voff0), 49152, V(W))); a(valu("v_add_u32", V(k_voff0), V(k_voff0), V(t2)))
    a(valu("v_xor_b32", V(k_voff1), 64, V(k_voff0)))
    if cfg.cpf:
        a(raw("s_getpc_b64 s[92:93]"))
        a(salu("s_lshr_b32", S(94), S(2), 3)); a(salu("s_lshl_b32", S(94), S(94), 10))
        a(valu("v_lshlrev_b32", V(t3), 2, V(0))); a(valu("v_add_u32", V(t3), S(94), V(t3)))
        a(valu("v_min_u32", V(t3), cfg.cpf * 1024 - 4, V(t3)))
        a(Ins("global_load_dword v255, v%d, s[92:93]" % t3, "dma", R("v", t3), [], 8, "CPF"))
    a(raw("s_waitcnt lgkmcnt(0)"))
    def srd(d, p, off):
        a(salu("s_add_u32", S(d), S(p), S(off))); a(salu("s_addc_u32", S(d + 1), S(p + 1), 0))
        a(salu("s_mov_b32", S(d + 2), HEAD_BYTES)); a(salu("s_mov_b32", S(d + 3), "0x20000"))
    srd(sQ, 4, s_t1); srd(sK, 6, s_t2)
    a(salu("s_mul_i32", S(s_wq), S(s_wave), 2 * 1056)); a(salu("s_add_u32", S(s_wq), S(s_wq), QBASE))
    a(salu("s_mul_i32", S(s_xw), S(s_wave), XW)); a(salu("s_add_u32", S(s_xw), S(s_xw), XBASE))
    first = o
    o = []; a = o.append
    srd(sV, 44, s_t2); srd(sO, 46, s_t1)
    if cfg.stamp:
        a(salu("s_mov_b32", S(sW), S(38))); a(salu("s_mov_b32", S(sW + 1), S(39)))
        a(salu("s_mov_b32", S(sW + 2), 268435456)); a(salu("s_mov_b32", S(sW + 3), "0x20000"))
    a(salu("s_mov_b32", S(s_c), "0x%08x" % CONST)); a(salu("s_mov_b32", S(s_big), HEAD_BYTES))
    a(valu("v_and_b32", V(t2), 1, V(G))); a(valu("v_lshlrev_b32", V(t2), 2, V(t2))); a(valu("v_xor_b32", V(t2), V(t1), V(t2)))
    a(valu("v_lshlrev_b32", V(t2), 4, V(t2))); a(valu("v_lshl_add_u32", V(t2), V(t0), 9, V(t2)))
    a(valu("v_lshl_add_u32", V(v_voff), V(W), 7, V(t2)))
    a(valu("v_lshrrev_b32", V(t0), 1, V(Q))); a(valu("v_mul_u32_u24", V(t0), 1056, V(t0)))
    a(valu("v_and_b32", V(t1), 1, V(Q))); a(valu("v_lshl_add_u32", V(t0), V(t1), 9, V(t0)))
    a(valu("v_xor_b32", V(t1), V(t1), V(G))); a(valu("v_lshl_add_u32", V(t0), V(t1), 4, V(t0)))
    a(valu("v_add_u32", V(q_rd), QBASE + 4 * QSLOT, V(t0)))
    a(valu("v_lshlrev_b32", V(t0), 4, V(L))); a(valu("v_add_u32", V(p_rd), PBASE, V(t0)))
    a(valu("v_mul_u32_u24", V(t1), 3072, V(W))); a(valu("v_add_u32", V(p_wr), V(p_rd), V(t1)))
    a(valu("v_lshlrev_b32", V(x_rd), 4, V(Q))); a(valu("v_lshl_add_u32", V(x_wr), V(W), 2, V(x_rd)))
    a(valu("v_lshlrev_b32", V(t0), 9, V(Q))); a(valu("v_lshl_add_u32", V(t0), V(G), 4, V(t0)))
    a(valu("v_lshl_add_u32", V(o_voff), V(W), 7, V(t0)))
    if cfg.fl:
        a(valu("v_and_b32", V(t0), 7, V(Q))); a(valu("v_lshlrev_b32", V(t0), 9, V(t0))); a(valu("v_lshrrev_b32", V(t1), 3, V(Q)))
        a(valu("v_lshl_add_u32", V(t0), V(t1), 6, V(t0))); a(valu("v_lshl_add_u32", V(t0), V(G), 4, V(t0)))
        a(valu("v_lshl_add_u32", V(o_voff), V(W), 7, V(t0))); a(valu("v_xor_b32", V(t0), 64, V(o_voff))); a(valu("v_add_u32", V(127), 4096, V(t0)))
        a(salu("s_mov_b32", S(68), "0xff00ff00")); a(salu("s_mov_b32", S(69), "0xff00ff00"))
    a(valu("v_lshrrev_b32", V(t0), 1, V(Q))); a(valu("v_xor_b32", V(t0), V(t0), V(G)))
    a(valu("v_lshlrev_b32", V(t0), 4, V(t0))); a(valu("v_lshl_add_u32", V(t0), V(Q), 7, V(t0)))
    a(valu("v_xor_b32", V(t1), 64, V(t0)))
    a(valu("v_add_u32", V(k_rd0), S(s_xw), V(t0))); a(valu("v_add_u32", V(k_rd1), S(s_xw), V(t1)))
    a(valu("v_lshrrev_b32", V(t0), 2, V(Q))); a(valu("v_lshl_add_u32", V(t0), V(G), 2, V(t0)))
    a(valu("v_and_b32", V(t1), 3, V(Q))); a(valu("v_bfe_u32", V(t2), V(t0), 1, 1)); a(valu("v_lshl_add_u32", V(t1), V(t2), 2, V(t1)))
    a(valu("v_lshlrev_b32", V(t1), 4, V(t1))); a(valu("v_lshl_add_u32", V(t1), V(t0), 7, V(t1)))
    a(valu("v_xor_b32", V(t2), 64, V(t1)))
    a(valu("v_add_u32", V(v_rd0), S(s_xw), V(t1))); a(valu("v_add_u32", V(v_rd1), S(s_xw), V(t2)))
    for i in range(4): a(valu("v_mov_b32", V(vONES + i), "0x3f803f80"))
    return first, o

def q_dma_const(u):
    o = []
    for jj in range(2):
        o.append([salu("s_add_u32", "m0", S(s_wq), ((u + 4) % 8) * QSLOT + jj * 32), salu("s_mov_b32", S(s_t0), u * 8192),
                  dma(dma_voff, sQ, S(s_t0), jj * 1024, cfg.q_flags, tag="Q%d" % u)])
    return o
def k_dma(u):
    j, kg = divmod(u, 3)
    off = (u % KRING) * 4096
    o = []
    for pp in range(4):
        o += [salu("s_add_u32", "m0", S(s_xw), off + pp * 1024), salu("s_mov_b32", S(s_t0), kg * 16384 + pp * 4096 + j * 128),
              dma(k_voff1 if pp & 1 else k_voff0, sK, S(s_t0), 0, cfg.ld_flags, tag="K%d" % u)]
    return o
def k_read(u):
    j, kg = divmod(u, 3)
    off = (u % KRING) * 4096
    o = [waitvm("K%d" % u)]
    for u2 in range(2):
        for ks in range(2):
            o.append(dsr("ds_read_b128", Kfrag(2 * kg + u2, 2 * j + ks), k_rd1 if ks else k_rd0, off + u2 * 2048, tag="KR%d" % u))
    return o
VR = XW // 2048
def v_dma(i):
    o = []
    for pp in range(2):
        o += [salu("s_add_u32", "m0", S(s_xw), (i % VR) * 2048 + pp * 1024), salu("s_mov_b32", S(s_t0), i * 8192 + pp * 4096),
              dma(v_voff, sV, S(s_t0), 0, cfg.ld_flags, tag="V%d" % i)]
    return o
def v_read(i):
    s, jj = divmod(i, 2)
    o = [waitvm("V%d" % i)]
    for dt in range(4):
        k, b, _ = Vfrag(s, dt)
        o.append(dsr("ds_read_b64_tr_b16", (k, b + 2 * jj, 2), v_rd1 if dt >= 2 else v_rd0, (i % VR) * 2048 + 8 * (dt % 2), tag="VR%d" % i))
    return o
def dummy_st():
    return [vstore(V(vT, 4), o_voff, sO, S(s_big), 0, "", tag="D")]

def q_reads(k, b):
    u = k + 1
    return [dsr("ds_read_b128", V(Freg(5 * k + b, i), 4), q_rd, (u % 2) * QSLOT + (4 * b + i) * 64) for i in range(4)]
def p_reads(k, c, poff=None, blk=None):
    u = k - 1
    po = POFF + (u % 2) * PBUF if poff is None else poff
    b = 5 * k + 2 + c if blk is None else blk
    return [dsr("ds_read_b128", V(Freg(b, i), 4), p_rd, po + (4 * c + i) * 1024) for i in range(4)]
def rc(l):
    for x in l: x.cost = cfg.rdcost
    return [[x] for x in l]
def mfma_slot(k, slot, obase=vO):
    if slot < 48:
        b, r = divmod(slot, 24); kt, i = divmod(r, 4); ks = 4 * b + i
        d = V(Sb(k + 1) + kt * 4, 4)
        need = R("v", Freg(5 * k + b, 0), 16) if r == 0 else ()
        return mfma(d, Kfrag(kt, ks), V(Freg(5 * k + b, i), 4), d if ks else 0, need=need)
    c, r = divmod(slot - 48, 16); dt, i = divmod(r, 4); s = 4 * c + i
    d = V(obase + dt * 4, 4)
    need = R("v", Freg(5 * k + 2 + c, 0), 16) if r == 0 else ()
    return mfma(d, Vfrag(s, dt), V(Freg(5 * k + 2 + c, i), 4), d if s else 0, need=need)

def b_chunk(u, i, sb=None, poff=None):
    b = (Sb(u) if sb is None else sb) + 8 * i
    fma = lambda r: valu("v_fma_f32", V(b + r), V(b + r), S(s_c), NV(mc))
    ex = lambda r: valu("v_exp_f32", V(b + r), V(b + r))
    cvt = lambda j: valu("v_cvt_pk_bf16_f32", V(b + j), V(b + 2 * j), V(b + 2 * j + 1))
    po = POFF + (u % 2) * PBUF if poff is None else poff
    seq = [fma(0), fma(1), ex(0), fma(2), fma(3), ex(1), ex(2), fma(4), cvt(0), ex(3), fma(5), fma(6), ex(4), fma(7), cvt(1), ex(5), ex(6), ex(7), cvt(2), cvt(3),
           dsw("ds_write_b128", p_wr, V(b, 4), po + i * 1024, tag="PW", cost=cfg.w128cost),
           mfma(V(vSUMD, 4), V(vONES, 4), V(b, 4), V(vSUMD, 4) if i else 0)]
    return [[x] for x in seq]
def max_ops(u, sb=None, dst=mx):
    b = Sb(u) if sb is None else sb
    o = [valu("v_max3_f32", V(dst), V(b), V(b + 1), V(b + 2))]
    i = 3
    while i < 24:
        if i + 1 < 24: o.append(valu("v_max3_f32", V(dst), V(dst), V(b + i), V(b + i + 1))); i += 2
        else: o.append(valu("v_max_f32", V(dst), V(dst), V(b + i))); i += 1
    return [[x] for x in o]
def max_publish(u, src=mx, off=None):
    off = XM[u % 2] if off is None else off
    return [[dsw("ds_write_b32", x_wr, V(src), off, tag="PW", cost=cfg.xcost)], [dsw("ds_max_f32", x_wr, V(src), off, tag="PW", cost=cfg.xcost)]]
def max_fetch():
    return [[valu("v_max3_f32", V(mc), V(vT), V(vT + 1), V(vT + 2))], [valu("v_max_f32", V(mc), V(mc), V(vT + 3))],
            [valu("v_mul_f32", V(mc), S(s_c), V(mc))]]
def sum_publish(u): return [[dsw("ds_write_b32", x_wr, V(vSUMD), XS[u % 2], tag="PW", cost=cfg.xcost)]]
def sum_fetch(dst=lnext):
    return [[valu("v_add_f32", V(vSUMD), V(vSUMD), V(vSUMD + 1))], [valu("v_add_f32", V(vSUMD + 2), V(vSUMD + 2), V(vSUMD + 3))],
            [valu("v_add_f32", V(dst), V(vSUMD), V(vSUMD + 2))]]
rlrot, o_voff2 = 126, 127
s_msk = 68
def rl_ops(r=rl, rr=rlrot, src=lnext):
    return [[valu("v_rcp_f32", V(r), V(src))], 1, [valu("v_mov_b32_dpp", V(rr), V(r), mods="row_ror:8 row_mask:0xf bank_mask:0xf")]]
def epi(obase, u, rlreg=rl, sched=False, rr=rlrot, soff=s_og):
    o = []
    if cfg.fl:
        for h in range(2):
            b = obase + h * 8
            if h == 0: mul = lambda r: valu("v_mul_f32", V(b + r), V(rlreg), V(b + r))
            else: mul = lambda r: valu("v_mul_f32_dpp", V(b + r), V(b + r), V(rr), mods="row_ror:8 row_mask:0xf bank_mask:0xf")
            cvt = lambda j: valu("v_cvt_pk_bf16_f32", V(b + j), V(b + 2 * j), V(b + 2 * j + 1))
            o += [mul(0), mul(1), mul(2), mul(3), cvt(0), mul(4), mul(5), cvt(1), mul(6), mul(7), cvt(2), cvt(3)]
        X = obase; Y = obase + 8
        o += [valu("v_cndmask_b32_e64", V(X + 4 + j), V(X + j), V(Y + j), S(s_msk, 2)) for j in range(4)]
        o += [valu("v_cndmask_b32_e64", V(Y + 4 + j), V(Y + j), V(X + j), S(s_msk, 2)) for j in range(4)]
        st0 = vstore(V(X + 4, 4), o_voff, sO, S(soff), 0, cfg.st_flags, tag="ST", cost=cfg.stcost)
        st1 = vstore(V(Y + 4, 4), o_voff2, sO, S(soff), 0, cfg.st_flags, tag="ST", cost=cfg.stcost)
        o = [[x] for x in o]
        if sched: return o + [[st0], cfg.stsp, [st1]]
        return o[:28] + [[st0]] + o[28:] + [[st1]]
    for h in range(2):
        b = obase + h * 8
        mul = lambda r: valu("v_mul_f32", V(b + r), V(rlreg), V(b + r))
        cvt = lambda j: valu("v_cvt_pk_bf16_f32", V(b + j), V(b + 2 * j), V(b + 2 * j + 1))
        o += [mul(0), mul(1), mul(2), mul(3), cvt(0), mul(4), mul(5), cvt(1), mul(6), mul(7), cvt(2), cvt(3),
              vstore(V(b, 4), o_voff, sO, S(s_og), h * 64, cfg.st_flags, tag="ST", cost=cfg.stcost)]
    o = [[x] for x in o]
    if sched:
        w = cfg.wdelay
        o = o[:12] + o[13:13 + w] + o[12:13] + o[13 + w:25] + [cfg.pubdelay] + o[25:]
    return o

class Sched:
    def __init__(self, n0, n1, gap=None):
        self.n0 = n0; self.n1 = n1; self.gap = gap or cfg.gap
        self.pre = {s: [] for s in range(n0, n1)}; self.post = {s: [] for s in range(n0, n1)}
        self.streams = []
    def pin(self, slot, item, post=False):
        slot = max(self.n0, min(self.n1 - 1, slot))
        (self.post if post else self.pre)[slot].append(item)
    def stream(self, items, start, end, earliest=None):
        self.streams.append({"items": list(items), "start": start, "end": min(end, self.n1 - 1), "i": 0, "earliest": earliest or {}})
    def emit(self, mf):
        out = []; prof = []
        cost = lambda it: 0 if isinstance(it, int) else sum(i.cost for i in it)
        for s in range(self.n0, self.n1):
            m = mf(s)
            if m is not None: out.append(m)
            budget = self.gap; used = 0
            for it in self.pre[s]:
                out += it; budget -= cost(it); used += cost(it)
            budget -= sum(cost(it) for it in self.post[s])
            while True:
                cands = []
                for st in self.streams:
                    while st["i"] < len(st["items"]) and isinstance(st["items"][st["i"]], int):
                        st["start"] = max(st["start"], s + st["items"][st["i"]]); st["i"] += 1
                    if st["i"] >= len(st["items"]) or s < st["start"] or s < st["earliest"].get(st["i"], -1): continue
                    rem = sum(cost(x) for x in st["items"][st["i"]:])
                    slack = (st["end"] - s) * self.gap - rem
                    cands.append((slack, st))
                if not cands: break
                cands.sort(key=lambda x: x[0])
                pick = None
                for slack, st in cands:
                    c = cost(st["items"][st["i"]])
                    if c <= budget or (budget >= self.gap and c > budget) or st["items"][st["i"]][0].kind == "mfma" and budget <= 0:
                        pick = st; break
                if pick is None:
                    slack, st = cands[0]
                    if slack < 0: pick = st
                if pick is None: break
                it = pick["items"][pick["i"]]; pick["i"] += 1
                out += it; used += cost(it)
                if it[0].kind == "mfma": budget = self.gap
                else: budget -= cost(it)
            for it in self.post[s]:
                out += it; used += cost(it)
            prof.append(used)
        for st in self.streams:
            for it in st["items"][st["i"]:]:
                if not isinstance(it, int): out += it
        return out, prof

def q_advance():
    return [[salu("s_add_u32", S(s_t2), S(s_qoff), 2 * QSLOT)],
            [salu("s_cmp_eq_u32", None, S(s_t2), 8 * QSLOT), salu("s_cselect_b32", S(s_t2), 0, S(s_t2))],
            [salu("s_sub_u32", S(s_qd), S(s_t2), S(s_qoff))]] + ([[salu("s_add_u32", S(s_dn), S(s_wq), S(s_qoff))]] if cfg.qlead == 6 else []) + [[salu("s_mov_b32", S(s_qoff), S(s_t2))],
            [valu("v_add_u32", V(q_rd), S(s_qd), V(q_rd))]]

def flat(items):
    o = []
    for it in items:
        if not isinstance(it, int): o += it
    return o
def b_items(k, poff=None):
    c0, c1, c2 = b_chunk(k, 0, poff=poff), b_chunk(k, 1, poff=poff), b_chunk(k, 2, poff=poff)
    w = cfg.wdelay
    items = c0[:-2] + c1[:w] + c0[-2:-1] + c1[w:w + 2] + c0[-1:] + c1[w + 2:-2] + c2[:w] + c1[-2:-1] + c2[w:w + 2] + c1[-1:] + c2[w + 2:-2]
    return items + [cfg.pubdelay] + c2[-1:] + c2[-2:-1] + [4] + sum_publish(k)

def interval(k, loop=False, C=True, B=True, E=True, SF=True, pins=(), streams=(), poff=None, rlp=None, qwait=None, q1=None, gap=None, bpoff=None):
    n1 = 96 if C else 48
    sc = Sched(0, n1, gap)
    head = []
    if B: head.append(dsr("ds_read_b128", V(vT, 4), x_rd, XM[k % 2]))
    if SF: head.append(dsr("ds_read_b128", V(vSUMD, 4), x_rd, XS[(k - 1) % 2]))
    sc.pin(0, head)
    q1s, q1e = q1 or (cfg.q1_start, cfg.q1_end)
    sc.stream(rc(q_reads(k, 1)), q1s, q1e)
    if C:
        sc.stream(rc(p_reads(k, 0, poff)), 25, 38)
        sc.stream(rc(p_reads(k, 1, poff)), 49, 55)
        sc.stream(rc(p_reads(k, 2, poff)), 65, 71)
        if k + 2 < NU or loop: sc.stream(rc(q_reads(k + 1, 0)), 81, 87)
    bend = min(cfg.b_end, n1 - 5)
    sf = sum_fetch() if SF else []
    if B: sc.stream(max_fetch() + sf + b_items(k, poff=bpoff), cfg.b_start, bend)
    if E:
        sc.stream(epi(vO, k - 2, sched=True) + [[salu("s_add_u32", S(s_og), S(s_og), 8192)]], 3, cfg.e_end)
        sc.stream(rl_ops(), cfg.e_end + 1, cfg.e_end + 8)
    elif SF:
        sc.stream(rl_ops() if rlp is None else [[valu("v_rcp_f32", V(rlp), V(lnext))]], 30, 44)
    mo = max_ops(k + 1); mp = max_publish(k + 1)
    ear = {j: 27 + 4 * min(5, (2 + 2 * j) // 4) + 4 for j in range(len(mo))}
    tail = []
    if C: sc.stream(mo + [cfg.pubdelay] + mp[:1] + [1] + mp[1:], 30, bend, earliest=ear)
    else:
        sc.stream(mo[:8], 30, 47, earliest=ear); tail = mo[8:] + mp
    if loop:
        if k % 2 == 0: sc.pin(cfg.dma_slot, [salu("s_mov_b32", S(s_dm), S(s_dn)) if cfg.qlead == 6 else salu("s_add_u32", S(s_dm), S(s_wq), S(s_qoff))])
        for jj in range(2):
            off = (k % 2) * QSLOT + jj * 32
            sc.pin(cfg.dma_slot + 1 + cfg.dma_sp * jj, [salu("s_add_u32", "m0", S(s_dm), off) if off else salu("s_mov_b32", "m0", S(s_dm))], post=True)
            sc.pin(cfg.dma_slot + 2 + cfg.dma_sp * jj, [dma(dma_voff, sQ, S(s_qg), jj * 1024, cfg.q_flags, tag="Q%d" % (k + cfg.qlead), cost=cfg.dmacost)])
        sc.stream([[salu("s_add_u32", S(s_qg), S(s_qg), 8192)]], cfg.dma_slot + cfg.dma_sp + 4, 90)
    if k % 2 == 0 and (k + 2 < NU or loop): sc.stream(q_advance(), max(14, q1e + 2, cfg.dma_slot + 2), 76 if C else 40)
    for st in streams: sc.stream(*st)
    for s_, it, post in pins: sc.pin(s_, it, post)
    out, prof = sc.emit(lambda s: mfma_slot(k, s))
    out += flat(tail)
    out += [waitlds("PW")]
    qw = k + 3 if qwait is None else qwait
    if qw and (qw < NU or loop): out.append(waitvm("Q%d" % qw))
    if loop and k % 2 == 0:
        out += [salu("s_cmp_lt_u32", None, S(s_og), 21 * 8192), barrier(), raw("s_cbranch_scc1 L_loop", "branch")]
    else:
        out.append(barrier())
    return out, prof

VSL = [12288, 0, 2048, 4096, 6144, 8192, 10240]
v_free = []; v_where = {}; v_next = [0]; v_done = [0]
def v_issue(newfree=()):
    v_free.extend(newfree)
    o = []
    while v_next[0] < 24 and v_free and v_next[0] - v_done[0] < cfg.vring:
        i = v_next[0]; x = v_free.pop(0); v_where[i] = x; v_next[0] += 1
        for pp in range(2):
            o.append([salu("s_add_u32", "m0", S(s_xw), x + pp * 1024), salu("s_mov_b32", S(s_t0), i * 8192 + pp * 4096),
                      dma(v_voff, sV, S(s_t0), 0, cfg.ld_flags, tag="V%d" % i, cost=8)])
    return o
def v_read(i):
    s, jj = divmod(i, 2)
    o = [waitvm("V%d" % i)]
    for dt in range(4):
        k, b, _ = Vfrag(s, dt)
        o.append(dsr("ds_read_b64_tr_b16", (k, b + 2 * jj, 2), v_rd1 if dt >= 2 else v_rd0, v_where[i] + 8 * (dt % 2), tag="VR%d" % i))
    return o

def phase_K(rest):
    o = []
    o += flat(q_dma_const(0))
    for u in range(KRING): o += k_dma(u)
    o += rest
    o.append(salu("s_mov_b32", S(s_qoff), 4 * QSLOT))
    for u in range(12):
        o += k_read(u)
        if u == 0: o += [barrier()]
        if u % 3 == 2:
            j = u // 3
            for i in range(2): o.append(dsr("ds_read_b128", V(vF + 4 * i, 4), q_rd, (2 * j + i) * 64))
        o.append(waitlds("KR%d" % u))
        if u + KRING < 12: o += k_dma(u + KRING)
        if u == 9: o += flat(q_dma_const(1)) + flat(q_dma_const(2))
        if u == 10: o += flat(v_issue([12288, 0, 2048]))[:12]; v_pend = None
        if u % 3 == 2:
            for kt in range(6):
                for i in range(2):
                    ks = 2 * j + i; d = V(Sb(0) + kt * 4, 4)
                    o.append(mfma(d, Kfrag(kt, ks), V(vF + 4 * i, 4), d if ks else 0))
    return o

def build():
    first, rest = setup()
    p0 = first + phase_K(rest)
    i2 = [[salu("s_add_u32", "m0", S(s_xw), v_where[2] + pp * 1024), salu("s_mov_b32", S(s_t0), 2 * 8192 + pp * 4096),
           dma(v_voff, sV, S(s_t0), 0, cfg.ld_flags, tag="V2", cost=8)] for pp in range(2)]
    pass
    more = i2 + v_issue([4096, 6144, 8192, 10240])
    mo = max_ops(0)
    for x, it in enumerate(mo):
        p0 += it
        if x % 3 == 2 and x // 3 < 4: p0 += more.pop(0)
    p0 += flat(max_publish(0)) + [waitlds("PW"), waitvm("Q1"), barrier()] + q_reads(0, 0)
    qx = [q_dma_const(t) for t in range(4, 5 + cfg.qlead)]
    q3 = q_dma_const(3)
    def service(i):
        a = v_read(i)
        v_done[0] += 1
        post = v_issue([v_where[i]])
        if not post and v_next[0] >= 24 and i >= 18 and len(qx) > cfg.qlead + 1 - cfg.nqv: post = qx.pop(0)
        if post: post[0] = [waitlds("VR%d" % i)] + post[0]
        return a, post
    def spins(lst, step=3):
        pins = []
        for i, sl in lst:
            a, b = service(i)
            pins.append((sl, a, False))
            for x, it in enumerate(b): pins.append((sl + 5 + step * x, it, True))
        return pins
    PO = [POFF, POFF + PBUF, POFF + 2 * PBUF, 0]
    RL = [122, 123, 124]; ROT = 125
    pins0 = [(1 + 4 * x, it, True) for x, it in enumerate(more)] + spins([(0, 18), (1, 30)]) + [(40, q3[0], True), (44, q3[1], True)]
    i0, _ = interval(0, C=False, E=False, SF=False, pins=pins0, qwait=2, gap=12)
    i0 += q_reads(1, 0)
    i1, _ = interval(1, C=False, E=False, pins=spins([(2, 2), (3, 16), (4, 30)]), rlp=RL[0], qwait=3, gap=12)
    i1 += q_reads(2, 0)
    i2, _ = interval(2, C=False, E=False, pins=spins([(5, 2), (6, 14), (7, 26), (8, 38)]), rlp=RL[1], qwait=0, gap=12, bpoff=PO[2])
    OV = [vS, vF, vS + 24, vO]; FR = vF + 16
    nf = cfg.vg_first
    groups = [(u, s) for s in range(nf) for u in (0, 1)]
    nb = len(groups)
    groups += [(u, s) for s in range(nf) for u in (2, 3)] + [(u, s) for s in range(nf, 12) for u in range(4)]
    lead = 3; pad = cfg.vg_pad
    mf = [None] * lead
    pos = []
    for g, (u, s) in enumerate(groups):
        if g == nb: mf += [None] * pad
        pos.append(len(mf))
        for dt in range(4):
            d = V(OV[u] + dt * 4, 4)
            mf.append(mfma(d, Vfrag(s, dt), V(FR + (g % 4) * 4, 4), d if s else 0))
    XB = pos[nb] - 3
    sc = Sched(0, len(mf), 16)
    sc.pin(0, [dsr("ds_read_b128", V(vT, 4), x_rd, XM[1]), dsr("ds_read_b128", V(vSUMD, 4), x_rd, XS[0])])
    sc.pin(XB, [waitlds("PW"), barrier()])
    for g, (u, s) in enumerate(groups):
        sl = 0 if g < 3 else pos[g - 3]
        if u == 3: sl = max(sl, XB)
        sc.pin(sl, [dsr("ds_read_b128", V(FR + (g % 4) * 4, 4), p_rd, PO[u] + s * 1024)])
    first_use = {}
    for g, (u, s) in enumerate(groups): first_use.setdefault(s, pos[g])
    sv = []; last = 0
    for i in range(9, 24):
        sl = max(last + 3, min(first_use[i // 2] - 14 + 4 * (i % 2), cfg.vg_s0 + cfg.vg_sd * (i - 9)))
        assert sl < first_use[i // 2] - 4, (i, sl)
        sv.append((i, sl)); last = sl
    for s_, it, post in spins(sv, step=2): sc.pin(s_, it, post)
    sc.stream(max_fetch() + sum_fetch() + [[valu("v_rcp_f32", V(RL[2]), V(lnext))]] + b_items(3, poff=PO[3]), 1, XB - 3)
    rot = lambda u: [valu("v_mov_b32_dpp", V(ROT), V(RL[u]), mods="row_ror:8 row_mask:0xf bank_mask:0xf")]
    e0 = [rot(0)] + epi(OV[0], 0, rlreg=RL[0], rr=ROT, soff=84)
    sc.stream(e0[:21], len(mf) - 9, len(mf) - 1)
    vg, _ = sc.emit(lambda s: mf[s])
    e1 = [rot(1)] + epi(OV[1], 1, rlreg=RL[1], rr=ROT, soff=85); e2 = [rot(2)] + epi(OV[2], 2, rlreg=RL[2], rr=ROT, soff=86, sched=True)
    vg = [salu("s_mov_b32", S(84), 0), salu("s_mov_b32", S(85), 8192), salu("s_mov_b32", S(86), 2 * 8192)] + vg
    vg += flat(e0[21:25]) + [waitvm("Q4"), barrier()] + q_reads(3, 0) + flat(e0[25:]) + flat(e1[:13])
    qd = sum(qx, [])
    n2 = min(len(qd), 4)
    i3p, _ = interval(3, C=False, B=False, E=False, SF=False, streams=[(e1[13:], 0, 8), (e2, 6, 44)], q1=(10, 14), qwait=5,
                      pins=[(16 + 8 * x, it, False) for x, it in enumerate(qd[:n2])])
    i3p += q_reads(4, 0)
    i4p, _ = interval(4, C=False, E=False, gap=12, qwait=7, pins=[(6 + 6 * x, it, False) for x, it in enumerate(qd[n2:])] +
                      [(44, [salu("s_mov_b32", S(s_qg), (5 + cfg.qlead) * 8192), salu("s_mov_b32", S(s_og), 3 * 8192), salu("s_add_u32", S(s_dm), S(s_wq), 6 * QSLOT)], True)])
    i4p += q_reads(5, 0)
    periods = [p0, i0 + i1 + i2 + stamp() + vg + stamp() + i3p + i4p + stamp() + cstamp(6)]
    profs = {}
    for k in range(5, 23, 2):
        a, pa = interval(k, loop=True); b, pb = interval(k + 1, loop=True)
        periods.append(a + b); profs[k] = pa + pb
    t = stamp() + cstamp(7)
    mf = []
    for u, ob in ((22, vS), (23, vS + 24)):
        for c in range(3):
            blk = 5 * 23 + 2 + 3 * (u - 22) + c
            for dt in range(4):
                for i in range(4):
                    s = 4 * c + i; d = V(ob + dt * 4, 4)
                    mf.append(mfma(d, Vfrag(s, dt), V(Freg(blk, i), 4), d if s else 0, need=R("v", Freg(blk, 0), 16) if dt == 0 and i == 0 else ()))
    X = cfg.tailx; lead = 2
    sc = Sched(0, 96 + lead, 16)
    sc.pin(0, p_reads(23, 0) + [dsr("ds_read_b128", V(vT, 4), x_rd, XM[1]), dsr("ds_read_b128", V(vSUMD, 4), x_rd, XS[0])])
    sc.stream(rc(p_reads(23, 1)), lead + 1, lead + 6); sc.stream(rc(p_reads(23, 2)), lead + 17, lead + 22)
    e21 = epi(vO, 21, sched=True) + [[salu("s_add_u32", S(s_og), S(s_og), 8192)]]
    sc.stream(e21[:8], 0, 1)
    sc.stream(max_fetch() + sum_fetch() + b_items(23), 2, X - 3)
    sc.pin(X, [waitlds("PW"), barrier()] + p_reads(24, 0, blk=5 * 23 + 5) + [dsr("ds_read_b128", V(vSUMD, 4), x_rd, XS[1])])
    sc.stream(rc(p_reads(24, 1, blk=5 * 23 + 6)), lead + 49, lead + 54); sc.stream(rc(p_reads(24, 2, blk=5 * 23 + 7)), lead + 65, lead + 70)
    e22 = epi(vS, 22, sched=True) + [[salu("s_add_u32", S(s_og), S(s_og), 8192)]]
    e22[0] = e22[0]
    sc.stream(e21[8:] + rl_ops() + sum_fetch(dst=mx) + [100] , X + 1, 60)
    sc.stream(e22 + rl_ops(src=mx), lead + 62, 94)
    out, _ = sc.emit(lambda s: mf[s - lead] if s >= lead else None)
    t += out + flat(epi(vS + 24, 23))
    periods.append(t)
    stream = []
    nl = len(periods)
    for p, lst in enumerate(periods):
        for k, ins in enumerate(lst):
            ins.period = p
            if 2 <= p <= nl - 2: ins.site = k
            stream.append(ins)
    fin = finalize(stream)
    txt = {}
    for ins in fin: txt.setdefault(ins.period, []).append(ins.text)
    for p in range(3, nl - 1): assert txt[p] == txt[2], "period %d differs" % p
    body = txt[0] + txt[1] + [".p2align 3", "L_loop:"] + txt[2] + txt[nl - 1]
    tail = []
    if cfg.stamp:
        tail += ["s_waitcnt vmcnt(0)"] + [x.text for x in stamp()]
        n = stamp_n[0]
        tail += ["s_waitcnt lgkmcnt(0)", "s_lshl_b32 s3, s2, 7"]
        for j in range(16):
            src = s_st + j if (j < 2 * n or j >= 12) else s_st + 2 * (n - 1) + (j & 1)
            tail.append("v_mov_b32 v%d, s%d" % (j, src))
        tail += ["v_mov_b32 v16, 0", "s_cmp_lg_u32 s%d, 0" % s_wave, "s_cbranch_scc1 L_done", "s_mov_b64 exec, 1"]
        for j in range(4): tail.append("buffer_store_dwordx4 v[%d:%d], v16, s[%d:%d], s3 offen offset:%d" % (4 * j, 4 * j + 3, sW, sW + 3, 16 * j))
    body += tail + ["L_done:", "s_endpgm"]
    sys.stderr.write("loop instrs: %d; filler cost profile:\n%s\n total %d\n" % (len(txt[2]), " ".join(map(str, profs[5])), sum(profs[5])))
    nw = [t for t in txt[2] if t.startswith("s_waitcnt")]; nn = [t for t in txt[2] if t.startswith("s_nop")]
    sys.stderr.write("loop waits %s nops %s\n" % (nw, nn))
    return wrap("\n".join("  " + t for t in body), 256, 256, LDS_TOTAL, 512, 256)

open(sys.argv[1], "w").write(build())
```
